```python
import torch

def _softmax(x, axis=-1):
    return torch.softmax(x, dim=axis)
def _gelu(x):
    return torch.nn.functional.gelu(x, approximate="tanh")
def _silu(x):
    return torch.nn.functional.silu(x)
def _sigmoid(x):
    return torch.sigmoid(x)
def _layernorm(x, axis=-1, eps=1e-5):
    m = x.mean(dim=axis, keepdim=True)
    v = x.var(dim=axis, keepdim=True, unbiased=False)
    return (x - m) / torch.sqrt(v + eps)
def _scatter_add(tgt, idx, src, axis=0):
    return tgt.clone().index_add_(axis, idx, src)
def _segment_sum(src, seg, n):
    out = torch.zeros((n,) + src.shape[1:], dtype=src.dtype)
    return out.index_add_(0, seg, src)
def _pad(x, pw):
    flat = tuple(v for pair in reversed(pw) for v in pair)
    return torch.nn.functional.pad(x, flat)

kernel_name = 'gated_mix__sliding_local_dilated__dense_activation_squared_relu__prompt'

def setup_inputs():

    _w = (lambda a: (lambda t: t.to(torch.bfloat16) if t.is_floating_point() else t)(torch.as_tensor(a)))
    def _A_setup():
        B, S, D = 1, 2048, 640
        return {
            "x": _w((lambda *s: torch.randn(*s, dtype=torch.bfloat16) * 0.05)(B, S, D)),
            "wqkv": _w((lambda *s: torch.randn(*s, dtype=torch.bfloat16) * 0.8)(D, 3 * D)),
            "wo": _w((lambda *s: torch.randn(*s, dtype=torch.bfloat16) * 0.05)(D, D)),
        }
    _A_in = _A_setup()

    def _B_setup():
        B, S, D, F = 1, 2048, 640, 1728
        return {
            "x": _w((lambda *s: torch.randn(*s, dtype=torch.bfloat16) * 0.05)(B, S, D)),
            "w1": _w((lambda *s: torch.randn(*s, dtype=torch.bfloat16) * 0.2)(D, F)),
            "b1": _w((lambda *s: torch.randn(*s, dtype=torch.bfloat16) * 0.2)(F)),
            "w2": _w((lambda *s: torch.randn(*s, dtype=torch.bfloat16) * 0.2)(F, D)),
            "b2": _w((lambda *s: torch.randn(*s, dtype=torch.bfloat16) * 0.2)(D)),
        }
    _B_in = _B_setup()

    return {
        "A_x": _A_in["x"],
        "A_wqkv": _A_in["wqkv"],
        "A_wo": _A_in["wo"],
        "B_x": _B_in["x"],
        "B_w1": _B_in["w1"],
        "B_b1": _B_in["b1"],
        "B_w2": _B_in["w2"],
        "B_b2": _B_in["b2"],
        "gate_w": _w((lambda *s: torch.randn(*s, dtype=torch.bfloat16) * 0.05)(640) * 16.0),
    }

def reference(A_x, A_wqkv, A_wo, B_x, B_w1, B_b1, B_w2, B_b2, gate_w):
    def _A_ref(x, wqkv, wo):
        B, S, D = x.shape
        H = 32; Dh = D // H
        W, dil = 8, 2
        qkv = (lambda x, *d: x.permute(*d))((x @ wqkv).reshape(B, S, 3, H, Dh), 2, 0, 3, 1, 4)
        q, k, v = qkv[0], qkv[1], qkv[2]
        scale = Dh ** -0.5
        pos = torch.arange(S)
        off = torch.arange(W) * dil
        idx = pos[:, None] - off[None, :]
        mask = idx >= 0
        idx_c = torch.where(mask, idx, 0).reshape(-1)
        kg = k[:, :, idx_c, :].reshape(B, H, S, W, Dh)
        vg = v[:, :, idx_c, :].reshape(B, H, S, W, Dh)
        logits = torch.einsum("bhsd,bhswd->bhsw", q, kg) * scale
        logits = torch.where(mask[None, None, :, :], logits, -1e9)
        attn = _softmax(logits, axis=-1)
        o = torch.einsum("bhsw,bhswd->bhsd", attn, vg)
        return (lambda x, *d: x.permute(*d))(o, 0, 2, 1, 3).reshape(B, S, D) @ wo

    def _B_ref(x, w1, b1, w2, b2):
        h = torch.einsum("bsd,df->bsf", x, w1) + b1
        zero = torch.zeros_like(h)
        r = torch.where(h > zero, h, zero)
        h = r * r
        out = torch.einsum("bsf,fd->bsd", h, w2) + b2
        return out

    x = A_x
    g = _sigmoid((x * gate_w).sum(-1, keepdims=True))
    a = _A_ref(x, A_wqkv, A_wo)
    b = _B_ref(x, B_w1, B_b1, B_w2, B_b2)
    return g * a + (1 - g) * b
```

```python
import re

TRANS = ("v_exp_f32", "v_log_f32", "v_rcp_f32", "v_rsq_f32", "v_sqrt_f32", "v_sin_f32", "v_cos_f32")

def parse_regs(tok):
    tok = tok.strip()
    neg = tok.lstrip('-')
    if neg.startswith('abs(') and neg.endswith(')'): neg = neg[4:-1]
    if neg.startswith('|') and neg.endswith('|'): neg = neg[1:-1]
    m = re.fullmatch(r'([vsa])(\d+)', neg)
    if m: return m.group(1), {int(m.group(2))}
    m = re.fullmatch(r'([vsa])\[(\d+):(\d+)\]', neg)
    if m: return m.group(1), set(range(int(m.group(2)), int(m.group(3)) + 1))
    if neg == 'vcc': return 's', {'vcc'}
    if neg in ('vcc_lo', 'vcc_hi'): return 's', {'vcc'}
    if neg == 'm0': return 's', {'m0'}
    if neg == 'exec': return 's', {'exec'}
    return None, set()

class Ins:
    def __init__(self, text):
        self.text = text
        t = text.split(';')[0].strip()
        self.is_label = t.endswith(':')
        self.op = ''
        self.vw = set(); self.vr = set(); self.sw = set(); self.sr = set()
        self.cls = 'other'; self.passes = 0
        self.srcc = set(); self.srcab = set(); self.nop = 0
        if self.is_label or not t or t.startswith('.'):
            self.cls = 'meta'; return
        parts = t.split(None, 1)
        self.op = op = parts[0]
        rest = parts[1] if len(parts) > 1 else ''
        ops = [o.strip() for o in re.split(r',(?![^\[]*\])', rest)] if rest else []
        mods = ''
        if ops:
            last = ops[-1].split()
            if last:
                ops[-1] = last[0]; mods = ' '.join(last[1:])
        self.mods = mods
        R = [parse_regs(o) for o in ops]
        def addr(i):
            if i < len(R):
                k, s = R[i]
                if k in ('v', 'a'): self.vr |= {(k, x) for x in s}
                elif k == 's': self.sr |= s
        def addw(i):
            if i < len(R):
                k, s = R[i]
                if k in ('v', 'a'): self.vw |= {(k, x) for x in s}
                elif k == 's': self.sw |= s
        if op == 's_nop':
            self.cls = 'nop'; self.nop = int(ops[0], 0) + 1
        elif op.startswith('v_mfma'):
            self.cls = 'mfma'
            self.passes = 2 if '4x4x4' in op else (4 if '16x16x32' in op or '16x16x16' in op else 8)
            addw(0); addr(1); addr(2); addr(3)
            for i in (1, 2):
                k, s = R[i]
                self.srcab |= {(k, x) for x in s}
            k, s = R[3]
            if k in ('v', 'a'): self.srcc = {(k, x) for x in s}
        elif op.startswith('v_'):
            self.cls = 'valu'
            if op.startswith('v_cmp'):
                addw(0)
                for i in range(1, len(R)): addr(i)
            elif op.startswith(('v_readfirstlane', 'v_readlane')):
                addw(0)
                for i in range(1, len(R)): addr(i)
            elif op.startswith('v_permlane') and 'swap' in op:
                addw(0); addw(1); addr(0); addr(1)
            elif op.startswith(('v_add_co', 'v_sub_co', 'v_addc_co', 'v_subb_co')):
                addw(0); addw(1)
                for i in range(2, len(R)): addr(i)
            else:
                addw(0)
                for i in range(1, len(R)): addr(i)
                if op.startswith(('v_fmac', 'v_dot2c', 'v_pk_fmac', 'v_writelane')): addr(0)
                if op.startswith('v_cndmask') and len(R) == 3: self.sr.add('vcc')
            if 'dpp' in op or 'row_' in mods or 'quad_perm' in mods: self.dpp = True
        elif op.startswith('ds_'):
            self.cls = 'ds'
            if op.startswith(('ds_read', 'ds_bpermute', 'ds_permute', 'ds_swizzle')):
                addw(0)
                for i in range(1, len(R)): addr(i)
            else:
                for i in range(len(R)): addr(i)
            if 'addtid' in op: self.sr.add('m0')
        elif op.startswith(('buffer_', 'global_')):
            self.cls = 'vmem'
            lds = ' lds' in (' ' + mods)
            self.lds = lds
            if 'load' in op and not lds:
                addw(0)
                for i in range(1, len(R)): addr(i)
            else:
                for i in range(len(R)): addr(i)
            if lds: self.sr.add('m0')
            self.wide_store = ('store' in op and ('x4' in op or 'x3' in op))
            if self.wide_store:
                k, s = R[0] if op.startswith('buffer_') else R[1]
                self.store_data = {(k, x) for x in s}
        elif op.startswith('s_'):
            self.cls = 'salu'
            nodst = ('s_cmp', 's_cbranch', 's_branch', 's_waitcnt', 's_barrier', 's_endpgm', 's_setprio', 's_sleep', 's_setpc', 's_bitcmp')
            if op.startswith(nodst):
                for i in range(len(R)): addr(i)
            else:
                addw(0)
                for i in range(1, len(R)): addr(i)
                if 'saveexec' in op: self.sw.add('exec')

def need(prev, cur):
    n = 0
    pv = prev.cls == 'valu'; pm = prev.cls == 'mfma'
    if pv:
        if cur.cls == 'mfma' and (prev.vw & cur.vr): n = max(n, 2)
        if cur.cls == 'valu':
            if cur.op.startswith(('v_readfirstlane', 'v_readlane')) and (prev.vw & cur.vr): n = max(n, 1)
            if cur.op.startswith('v_permlane') and (prev.vw & cur.vr): n = max(n, 2)
            if getattr(cur, 'dpp', False) and (prev.vw & cur.vr): n = max(n, 2)
            if prev.sw & cur.sr:
                n = max(n, 4 if cur.op.startswith(('v_readlane', 'v_writelane')) else 2)
            if prev.op.startswith(TRANS) and (prev.vw & (cur.vr | cur.vw)): n = max(n, 1)
        if cur.cls == 'mfma' and prev.op.startswith(TRANS) and (prev.vw & cur.vr): n = max(n, 2)
        if cur.cls == 'vmem' and (prev.sw & cur.sr): n = max(n, 5)
        if cur.cls == 'salu' and (prev.sw & cur.sr): n = max(n, 4)
        if cur.cls in ('vmem', 'ds') and prev.op.startswith(TRANS) and (prev.vw & cur.vr): n = max(n, 1)
    if pm:
        tab = {2: 5, 4: 8, 8: 12}[prev.passes]
        if cur.cls in ('valu', 'vmem', 'ds') and (prev.vw & (cur.vr | cur.vw)): n = max(n, tab)
        if cur.cls == 'mfma':
            if prev.vw & cur.srcab: n = max(n, tab)
            if prev.vw & cur.srcc:
                if prev.vw == cur.srcc and prev.passes == cur.passes:
                    n = max(n, 2 if prev.passes == 2 else 0)
                else:
                    n = max(n, {2: 4, 4: 6, 8: 10}[prev.passes])
            elif prev.vw & cur.vw:
                n = max(n, {2: 4, 4: 6, 8: 10}[prev.passes])
        if cur.cls == 'valu' and (prev.srcc & cur.vw): n = max(n, {2: 1, 4: 3, 8: 7}[prev.passes])
    if prev.cls == 'salu' and 'm0' in prev.sw and 'm0' in cur.sr and cur.cls in ('vmem', 'ds'): n = max(n, 1)
    if prev.cls == 'vmem' and getattr(prev, 'wide_store', False):
        if cur.cls == 'valu' and (prev.store_data & cur.vw): n = max(n, 2)
        elif cur.cls in ('ds', 'vmem', 'mfma') and (prev.store_data & cur.vw): n = max(n, 1)
    return n

def fix_hazards(lines, verbose=False):
    out = []
    inserted = 0
    for text in lines:
        cur = Ins(text)
        if cur.cls == 'meta':
            out.append(cur); continue
        dist = 0; req = 0
        for prev in reversed(out):
            if prev.cls == 'meta': continue
            if dist >= 13: break
            r = need(prev, cur)
            if r > dist: req = max(req, r - dist)
            dist += prev.nop if prev.cls == 'nop' else 1
        if req > 0:
            inserted += 1
            if verbose: print(f"hazard: +{req} before: {text}")
            while req > 0:
                k = min(req, 16)
                out.append(Ins(f"s_nop {k-1}")); req -= k
        out.append(cur)
    return [i.text for i in out], inserted

class Emitter:
    def __init__(self):
        self.lines = []
        self.uid = 0
    def __call__(self, s):
        for l in s.split('\n'):
            l = l.strip()
            if l: self.lines.append(l)
    def label(self, name): self.lines.append(name + ':')
    def newlabel(self, base):
        self.uid += 1
        return f"L_{base}_{self.uid}"
    def text(self, verbose=False):
        t, n = fix_hazards(self.lines, verbose)
        return '\n'.join(('    ' + x if not x.endswith(':') else x) for x in t), n
```

```python
import sys
from emit import Emitter

KNAME = "gated_mix__sliding_local_dilated__dense_activation_squared_relu__prompt_kernel"

HP_OFF = 0x0
OP_OFF = 0x700000
WP_OFF = 0xA00000
G_OFF = 0xD00000
FL_OFF = 0xD10000
TS_OFF = 0xD20000
WS_SIZE = 0xE00000

NS = 5
STAGE = 24576
GATE4 = NS * STAGE
RSCR = GATE4 + 5632
PQ = 488
OB = 128 * PQ
PO = 176
LDS_BYTES = 163840

BIG = 0x80000000

sP = 2
sWAVE, sISA, sRB, sCG = 32, 33, 34, 35
X, W, WS, M1, M2 = 36, 40, 44, 48, 52
T0, T1, T2, T3, T4, T5, T6, T7 = 56, 57, 58, 59, 60, 61, 62, 63
sLW = 64
sKX, sKW0, sKW1, sLX, sLWb = 65, 66, 67, 68, 69
sSLOT, sDELTA, sGD, sIT = 70, 71, 72, 73
sMH, sNH = 74, 75
sT0 = 76
sPITCH = 77
sI3, sJ3 = 78, 79
sACT, sWP, sWP4 = 80, 81, 82
sODD = 83
sFLAG = 84
sTS = 86
sEX = 88
sM = 90
DBG = 96

def srd(e, base, ptr, nbytes):
    e(f"s_mov_b32 s{base}, s{ptr}")
    e(f"s_and_b32 s{base+1}, s{ptr+1}, 0xffff")
    if isinstance(nbytes, int): e(f"s_mov_b32 s{base+2}, {nbytes}")
    else: e(f"s_mov_b32 s{base+2}, {nbytes}")
    e(f"s_mov_b32 s{base+3}, 0x20000")

def csel(e, dst, a, b):
    e(f"s_mov_b32 s{dst}, {b}")
    e(f"s_cselect_b32 s{dst}, {a}, s{dst}")

class VM:
    def __init__(self, e): self.e = e; self.q = []
    def issue(self, tag): self.q.append(tag)
    def wait(self, tag):
        idx = max(i for i, t in enumerate(self.q) if t == tag)
        n = len(self.q) - 1 - idx
        assert n < 64, n
        self.e(f"s_waitcnt vmcnt({n})")
        self.q = self.q[idx + 1:]
    def waitall(self):
        self.e("s_waitcnt vmcnt(0)"); self.q = []

def gen(opts=None):
    o = dict(stop=None, ts=False)
    if opts: o.update(opts)
    e = Emitter()
    nstamp = [0]
    def stamp(idx):
        if not o['ts']: return
        e(f"s_memrealtime s[{sTS}:{sTS+1}]")
        e("s_waitcnt lgkmcnt(0)")
        e(f"v_writelane_b32 v255, s{sTS}, {idx}")

    e(f"s_cmp_ge_u32 s2, 256")
    e("s_cbranch_scc1 L_end")
    if o['ts']:
        e("v_mov_b32 v255, 0"); stamp(8)
    e("s_load_dwordx16 s[8:23], s[0:1], 0")
    e("s_load_dwordx8 s[24:31], s[0:1], 64")
    e("v_and_b32 v1, 63, v0")
    e("v_lshrrev_b32 v2, 6, v0")
    e("s_nop 0")
    e(f"v_readfirstlane_b32 s{sWAVE}, v2")
    e(f"s_and_b32 s{T0}, s2, 7")
    e(f"s_lshr_b32 s{T1}, s2, 3")
    e(f"s_cmp_lt_u32 s{T0}, 4"); e("s_cbranch_scc1 L_role_a4")
    e(f"s_cmp_eq_u32 s{T0}, 4"); e("s_cbranch_scc1 L_role_x4")
    e(f"s_cmp_eq_u32 s{T0}, 7"); e("s_cbranch_scc1 L_role_x7")
    e(f"s_mov_b32 s{sISA}, 0")
    e(f"s_sub_u32 s{T2}, s{T0}, 5"); e(f"s_lshl_b32 s{T2}, s{T2}, 3")
    e(f"s_lshr_b32 s{sRB}, s{T1}, 2"); e(f"s_add_u32 s{sRB}, s{sRB}, s{T2}")
    e(f"s_and_b32 s{sCG}, s{T1}, 3")
    e("s_branch L_role_done")
    e.label("L_role_x7")
    e(f"s_mov_b32 s{sISA}, 0")
    e(f"s_mul_i32 s{sRB}, s{T1}, 43"); e(f"s_lshr_b32 s{sRB}, s{sRB}, 7")
    e(f"s_mul_i32 s{T2}, s{sRB}, 3"); e(f"s_sub_u32 s{sCG}, s{T1}, s{T2}"); e(f"s_add_u32 s{sCG}, s{sCG}, 4")
    e("s_branch L_role_done")
    e.label("L_role_x4")
    e(f"s_cmp_lt_u32 s{T1}, 16"); e("s_cbranch_scc0 L_role_x4b")
    e(f"s_mov_b32 s{sISA}, 1")
    e(f"s_lshr_b32 s{sRB}, s{T1}, 3"); e(f"s_add_u32 s{sRB}, s{sRB}, 16")
    e(f"s_and_b32 s{sCG}, s{T1}, 7")
    e("s_branch L_role_done")
    e.label("L_role_x4b")
    e(f"s_mov_b32 s{sISA}, 0")
    e(f"s_sub_u32 s{T1}, s{T1}, 16")
    e(f"s_mul_i32 s{sRB}, s{T1}, 43"); e(f"s_lshr_b32 s{sRB}, s{sRB}, 7")
    e(f"s_mul_i32 s{T2}, s{sRB}, 3"); e(f"s_sub_u32 s{sCG}, s{T1}, s{T2}"); e(f"s_add_u32 s{sCG}, s{sCG}, 4")
    e(f"s_add_u32 s{sRB}, s{sRB}, 11")
    e(f"s_cmp_eq_u32 s{T1}, 15")
    e(f"s_cselect_b32 s{sRB}, 10, s{sRB}")
    e(f"s_cselect_b32 s{sCG}, 6, s{sCG}")
    e("s_branch L_role_done")
    e.label("L_role_a4")
    e(f"s_mov_b32 s{sISA}, 1")
    e(f"s_lshr_b32 s{T2}, s{T0}, 1"); e(f"s_lshl_b32 s{T2}, s{T2}, 3")
    e(f"s_lshr_b32 s{sRB}, s{T1}, 2"); e(f"s_add_u32 s{sRB}, s{sRB}, s{T2}")
    e(f"s_and_b32 s{T2}, s{T0}, 1"); e(f"s_lshl_b32 s{T2}, s{T2}, 2")
    e(f"s_and_b32 s{sCG}, s{T1}, 3"); e(f"s_add_u32 s{sCG}, s{sCG}, s{T2}")
    e.label("L_role_done")
    e(f"s_and_b32 s{T0}, s2, 7"); e(f"s_lshr_b32 s{T1}, s2, 3")
    e(f"s_lshl_b32 s{sI3}, s{T0}, 2"); e(f"s_lshr_b32 s{T2}, s{T1}, 3"); e(f"s_add_u32 s{sI3}, s{sI3}, s{T2}")
    e(f"s_and_b32 s{sJ3}, s{T1}, 7")
    e(f"s_and_b32 s{sODD}, s{sCG}, 1")
    e(f"s_mul_i32 s{sT0}, s{sRB}, 114"); e(f"s_sub_u32 s{sT0}, s{sT0}, 14")
    e(f"s_cmp_eq_u32 s{sISA}, 1")
    csel(e, sPITCH, 3840, 3456)
    e(f"s_lshl_b32 s{T2}, s{sRB}, 3"); e(f"s_add_u32 s{T2}, s{T2}, s{sCG}")
    e(f"s_mul_i32 s{T3}, s{sRB}, 7"); e(f"s_add_u32 s{T3}, s{T3}, s{sCG}"); e(f"s_add_u32 s{T3}, s{T3}, 144")
    e(f"s_cmp_eq_u32 s{sISA}, 1")
    e(f"s_cselect_b32 s{sFLAG}, s{T2}, s{T3}")
    e("s_waitcnt lgkmcnt(0)")
    stamp(0)
    srd(e, X, 8, 2048*1280)
    e(f"s_cmp_eq_u32 s{sISA}, 1")
    e(f"s_cselect_b32 s{W}, s10, s16"); e(f"s_cselect_b32 s{T0}, s11, s17")
    csel(e, W+2, 640*3840, 640*3456)
    e(f"s_and_b32 s{W+1}, s{T0}, 0xffff"); e(f"s_mov_b32 s{W+3}, 0x20000")
    srd(e, WS, 30, WS_SIZE)
    srd(e, DBG, 28, 256)
    e(f"s_cmp_ge_u32 s{sWAVE}, 4")
    e("s_cbranch_scc1 L_loader")

    vX, vE, vO, vG0, vG1 = 2, 3, 4, 5, 6
    ACC = 8
    XB = [136, 152]; WB = [168, 200]
    e(f"s_lshr_b32 s{sMH}, s{sWAVE}, 1"); e(f"s_and_b32 s{sNH}, s{sWAVE}, 1")
    e(f"s_cmp_eq_u32 s2, 0"); e("s_cbranch_scc0 L_noclear")
    e(f"s_cmp_eq_u32 s{sWAVE}, 0"); e("s_cbranch_scc0 L_noclear")
    e("v_lshlrev_b32 v8, 6, v1"); e("v_mov_b32 v9, 0")
    for k in range(4):
        e(f"s_mov_b32 s{T0}, {FL_OFF + k*4096}")
        e(f"buffer_store_dword v9, v8, s[{WS}:{WS+3}], s{T0} offen sc1")
    e("s_waitcnt vmcnt(0)")
    e("v_mov_b32 v9, 1"); e("v_mov_b32 v8, 0")
    e(f"s_mov_b64 s[{sEX}:{sEX+1}], exec"); e("s_mov_b64 exec, 1")
    e(f"buffer_store_dword v9, v8, s[{DBG}:{DBG+3}], 0 offen sc1")
    e(f"s_mov_b64 exec, s[{sEX}:{sEX+1}]")
    e.label("L_noclear")
    e(f"s_mov_b32 s{M1}, s18"); e(f"s_and_b32 s{M1+1}, s19, 0xffff")
    e(f"s_cmp_eq_u32 s{sISA}, 1"); e(f"s_cselect_b32 s{M1+2}, 0, 3456"); e(f"s_mov_b32 s{M1+3}, 0x20000")
    e("v_lshrrev_b32 v7, 4, v1")
    e("v_lshlrev_b32 v232, 3, v7")
    e(f"s_lshl_b32 s{T0}, s{sCG}, 9"); e(f"s_lshl_b32 s{T1}, s{sNH}, 8"); e(f"s_add_u32 s{T0}, s{T0}, s{T1}")
    e(f"v_add_u32 v232, s{T0}, v232")
    for nt in range(8):
        e(f"buffer_load_dwordx2 v[{XB[0]+2*nt}:{XB[0]+2*nt+1}], v232, s[{M1}:{M1+3}], 0 offen offset:{nt*32}")
    e("v_and_b32 v233, 15, v1")
    e("v_lshrrev_b32 v234, 2, v233")
    e("v_sub_u32 v234, 0, v234"); e("v_and_b32 v234, 3, v234")
    e("v_xor_b32 v234, v7, v234")
    e("v_lshlrev_b32 v234, 4, v234")
    e(f"v_lshl_add_u32 v{vX}, v233, 6, v234")
    e(f"s_lshl_b32 s{T0}, s{sMH}, 12")
    e(f"v_add_u32 v{vX}, s{T0}, v{vX}")
    e("v_lshrrev_b32 v233, 2, v1"); e("v_and_b32 v233, 3, v233")
    e("v_lshl_add_u32 v233, v7, 3, v233")
    e("v_and_b32 v234, 3, v1"); e("v_lshlrev_b32 v234, 3, v234")
    e("v_lshl_add_u32 v235, v233, 6, v234")
    e(f"s_lshl_b32 s{T0}, s{sNH}, 13"); e(f"s_add_u32 s{T0}, s{T0}, 8192")
    e(f"v_add_u32 v235, s{T0}, v235")
    e("v_and_b32 v236, 1, v7"); e("v_lshlrev_b32 v236, 5, v236")
    e(f"v_add_u32 v{vE}, v235, v236")
    e("v_xor_b32 v236, 32, v236")
    e(f"v_add_u32 v{vO}, v235, v236")
    e(f"v_add_u32 v{vG0}, {3*2048}, v{vO}"); e(f"v_add_u32 v{vG1}, {3*2048+256}, v{vO}")
    e(f"s_and_b32 s{T0}, s{sISA}, s{sNH}")
    e(f"s_mov_b32 s{sGD}, 0")
    e(f"s_cmp_eq_u32 s{T0}, 1"); e("s_cbranch_scc0 L_nogate")
    e(f"v_lshlrev_b32 v{vG0}, 3, v233"); e(f"v_add_u32 v{vG0}, {GATE4}, v{vG0}"); e(f"v_add_u32 v{vG1}, 32, v{vG0}")
    e(f"s_mov_b32 s{sGD}, 1")
    e.label("L_nogate")
    e("s_waitcnt vmcnt(0)")
    for nt in range(8):
        a = ACC + nt * 16
        s0 = XB[0] + 2 * nt
        e(f"v_lshlrev_b32 v{a}, 16, v{s0}"); e(f"v_and_b32 v{a+1}, 0xffff0000, v{s0}")
        e(f"v_lshlrev_b32 v{a+2}, 16, v{s0+1}"); e(f"v_and_b32 v{a+3}, 0xffff0000, v{s0+1}")
        for mt in range(1, 4):
            for r in range(4): e(f"v_mov_b32 v{a+4*mt+r}, v{a+r}")
    e(f"s_mov_b32 s{sSLOT}, 0")
    def reads(buf):
        L = []
        for mt in range(4): L.append(f"ds_read_b128 v[{XB[buf]+4*mt}:{XB[buf]+4*mt+3}], v{vX} offset:{mt*1024}")
        for nt in range(8):
            for h in range(2):
                d = WB[buf] + 4 * nt + 2 * h
                if nt == 7: L.append(f"ds_read_b64_tr_b16 v[{d}:{d+1}], v{vG0 if h == 0 else vG1}")
                else: L.append(f"ds_read_b64_tr_b16 v[{d}:{d+1}], v{vE if nt % 2 == 0 else vO} offset:{(nt>>1)*2048 + h*256}")
        return L
    def advance():
        L = [f"s_add_u32 s{sSLOT}, s{sSLOT}, 1", f"s_cmp_eq_u32 s{sSLOT}, {NS}",
             f"s_mov_b32 s{sDELTA}, {STAGE}", f"s_cselect_b32 s{sDELTA}, {-(NS-1)*STAGE & 0xffffffff}, s{sDELTA}", f"s_cselect_b32 s{sSLOT}, 0, s{sSLOT}",
             f"s_cmp_eq_u32 s{sGD}, 1", f"s_cselect_b32 s{T7}, 256, s{sDELTA}"]
        V = [f"v_add_u32 v{vX}, s{sDELTA}, v{vX}", f"v_add_u32 v{vE}, s{sDELTA}, v{vE}", f"v_add_u32 v{vO}, s{sDELTA}, v{vO}",
             f"v_add_u32 v{vG0}, s{T7}, v{vG0}", f"v_add_u32 v{vG1}, s{T7}, v{vG1}"]
        return L, V
    e("s_barrier")
    stamp(1)
    for r in reads(0): e(r)
    e("s_waitcnt lgkmcnt(0)")
    e("s_barrier")
    e(f"s_mov_b32 s{sIT}, 10")
    e(".p2align 3")
    e.label("L_main")
    for half in range(2):
        S, V = advance()
        fill = S + V + reads(1 - half)
        for m in range(32):
            nt, mt = m // 4, m % 4
            a = ACC + (nt * 4 + mt) * 4
            e(f"v_mfma_f32_16x16x32_bf16 v[{a}:{a+3}], v[{WB[half]+4*nt}:{WB[half]+4*nt+3}], v[{XB[half]+4*mt}:{XB[half]+4*mt+3}], v[{a}:{a+3}]")
            if m == 0:
                for s_ in S: e(fill.pop(0))
            if fill: e(fill.pop(0))
        assert not fill
        e("s_waitcnt lgkmcnt(0)")
        if half == 1:
            e(f"s_sub_u32 s{sIT}, s{sIT}, 1"); e(f"s_cmp_lg_u32 s{sIT}, 0")
        e("s_barrier")
    e("s_cbranch_scc1 L_main")
    stamp(2)
    e("v_mov_b32 v233, 0")
    e(f"buffer_load_dword v232, v233, s[{DBG}:{DBG+3}], 0 offen sc1")
    e("s_nop 7")
    e(f"s_cmp_eq_u32 s{sISA}, 1"); e("s_cbranch_scc1 L_epiA")

    e(f"s_lshl_b32 s{T0}, s{sRB}, 1"); e(f"s_add_u32 s{T0}, s{T0}, s{sMH}"); e(f"s_mul_i32 s{T0}, s{T0}, 54")
    e(f"s_lshl_b32 s{T1}, s{sCG}, 3"); e(f"s_lshl_b32 s{T2}, s{sNH}, 2"); e(f"s_add_u32 s{T1}, s{T1}, s{T2}")
    e(f"s_add_u32 s{T0}, s{T0}, s{T1}"); e(f"s_lshl_b32 s{T0}, s{T0}, 12")
    if HP_OFF: e(f"s_add_u32 s{T0}, s{T0}, {HP_OFF}")
    e("v_lshlrev_b32 v234, 4, v1")
    for up in range(4):
        if up == 2:
            e(f"s_cmp_ge_u32 s{T1}, 52"); e("s_cbranch_scc1 L_epiB_done")
        for mt in range(4):
            d = 236 + 4 * ((up * 4 + mt) % 4)
            for tt in range(2):
                a = ACC + ((2 * up + tt) * 4 + mt) * 4
                for r in range(4): e(f"v_max_f32 v{a+r}, 0, v{a+r}")
                e(f"v_pk_mul_f32 v[{a}:{a+1}], v[{a}:{a+1}], v[{a}:{a+1}]")
                e(f"v_pk_mul_f32 v[{a+2}:{a+3}], v[{a+2}:{a+3}], v[{a+2}:{a+3}]")
                e(f"v_cvt_pk_bf16_f32 v{d+2*tt}, v{a}, v{a+1}")
                e(f"v_cvt_pk_bf16_f32 v{d+2*tt+1}, v{a+2}, v{a+3}")
            e(f"buffer_store_dwordx4 v[{d}:{d+3}], v234, s[{WS}:{WS+3}], s{T0} offen offset:{mt*1024} sc1")
        e(f"s_add_u32 s{T0}, s{T0}, 4096")
    e.label("L_epiB_done")
    e("s_branch L_p1_store_done")

    e.label("L_epiA")
    e("v_and_b32 v233, 15, v1"); e("v_lshrrev_b32 v7, 4, v1")
    e(f"s_lshl_b32 s{T0}, s{sMH}, 6")
    e(f"v_add_u32 v233, s{T0}, v233")
    e(f"v_mul_u32_u24 v234, {PQ}, v233")
    e("v_lshl_add_u32 v234, v7, 3, v234")
    e(f"s_lshl_b32 s{T0}, s{sODD}, 5"); e(f"v_add_u32 v235, s{T0}, v234")
    e(f"s_lshl_b32 s{T0}, s{sODD}, 7"); e(f"v_subrev_u32 v236, s{T0}, v234")
    colE = [0, 32, 64, 96, 160, 192, 224, 256, 320, 352, 384, 416, 128, 288, 448]
    e(f"s_cmp_eq_u32 s{sNH}, 1"); e("s_cbranch_scc1 L_epiA_n1")
    def qkv_write(nh):
        for nt in range(8):
            tile = 8 * nh + nt
            if tile == 15: continue
            for mt in range(4):
                a = ACC + (nt * 4 + mt) * 4
                d = 238 + 2 * ((nt * 4 + mt) % 8)
                e(f"v_cvt_pk_bf16_f32 v{d}, v{a}, v{a+1}"); e(f"v_cvt_pk_bf16_f32 v{d+1}, v{a+2}, v{a+3}")
                e(f"ds_write_b64 v{235 if tile < 12 else 236}, v[{d}:{d+1}] offset:{colE[tile] + mt*16*PQ}")
    qkv_write(0)
    e("s_branch L_epiA_w")
    e.label("L_epiA_n1")
    qkv_write(1)
    e(f"s_cmp_eq_u32 s{sCG}, 0"); e("s_cbranch_scc0 L_epiA_w")
    for mt in range(4):
        a = ACC + (7 * 4 + mt) * 4
        e(f"v_cvt_pk_bf16_f32 v238, v{a}, v{a}"); e("v_lshlrev_b32 v238, 16, v238")
        e("v_mul_f32 v238, 0xbfb8aa3b, v238")
        e("v_exp_f32 v238, v238"); e("v_add_f32 v238, 1.0, v238"); e("v_rcp_f32 v238, v238")
        e("v_cvt_pk_bf16_f32 v238, v238, v238"); e(f"v_lshlrev_b32 v{240+mt}, 16, v238")
    e("v_and_b32 v233, 15, v1")
    for mt in range(4):
        e(f"v_add_u32 v238, {16*mt}, v233")
        e("v_lshlrev_b32 v239, 1, v238"); e(f"s_add_u32 s{T0}, s{sT0}, s{sMH}"); e(f"v_add_u32 v239, s{T0}, v239")
        e("v_lshlrev_b32 v244, 2, v239")
        e(f"v_cmp_le_u32 s[{sM}:{sM+1}], 7, v238"); e(f"v_cmp_gt_u32 s[{sM+2}:{sM+3}], 16, v1"); e(f"v_cmp_gt_u32 vcc, 2048, v239")
        e(f"s_and_b64 s[{sM}:{sM+1}], s[{sM}:{sM+1}], s[{sM+2}:{sM+3}]"); e(f"s_and_b64 vcc, vcc, s[{sM}:{sM+1}]")
        e(f"v_mov_b32 v245, {BIG}"); e("s_nop 1"); e("v_cndmask_b32 v244, v245, v244, vcc")
        e(f"s_mov_b32 s{T1}, {G_OFF}")
        e(f"buffer_store_dword v{240+mt}, v244, s[{WS}:{WS+3}], s{T1} offen sc1")
    e.label("L_epiA_w")
    e("s_waitcnt lgkmcnt(0)")
    e.label("L_attn")
    e("s_barrier")
    stamp(3)
    e(f"s_and_b32 s{T0}, s{sWAVE}, 3"); e(f"s_lshr_b32 s{T1}, s{sWAVE}, 2")
    e(f"s_mul_i32 s{T2}, s{T1}, {64*PQ}"); e(f"s_mul_i32 s{T3}, s{T0}, 40"); e(f"s_add_u32 s{T2}, s{T2}, s{T3}")
    e(f"v_mul_u32_u24 v2, {PQ}, v1"); e(f"v_add_u32 v2, s{T2}, v2")
    for kb in range(3):
        e(f"v_subrev_u32 v9, {8-4*kb}, v1"); e("v_max_i32 v9, 0, v9")
        e(f"v_mul_u32_u24 v9, {PQ}, v9"); e(f"v_add_u32 v{3+kb}, s{T2}, v9")
    e("v_and_b32 v9, 48, v1"); e("v_and_b32 v10, 3, v1"); e("v_lshl_add_u32 v9, v10, 2, v9")
    e("v_bfe_u32 v10, v1, 2, 2"); e("v_add_u32 v9, v9, v10")
    for kb in range(3):
        e(f"v_subrev_u32 v10, {8-4*kb}, v9"); e("v_max_i32 v10, 0, v10")
        e(f"v_mul_u32_u24 v10, {PQ}, v10"); e(f"v_add_u32 v{6+kb}, s{T2}, v10")
    Q = 16; K = 28; V = 60; S = 92; O = 104
    for s_ in range(5): e(f"ds_read_b64 v[{Q+2*s_}:{Q+2*s_+1}], v2 offset:{8*s_}")
    for kb in range(3):
        for s_ in range(5): e(f"ds_read_b64 v[{K+10*kb+2*s_}:{K+10*kb+2*s_+1}], v{3+kb} offset:{160+8*s_}")
    for kb in range(3):
        for dg in range(5): e(f"ds_read_b64_tr_b16 v[{V+10*kb+2*dg}:{V+10*kb+2*dg+1}], v{6+kb} offset:{320+8*dg}")
    for r in range(12): e(f"v_mov_b32 v{S+r}, 0")
    for r in range(20): e(f"v_mov_b32 v{O+r}, 0")
    e("v_and_b32 v9, 3, v1")
    e(f"v_cmp_eq_u32 s[{sM}:{sM+1}], 0, v9"); e(f"v_cmp_ge_u32 s[{sM+2}:{sM+3}], 1, v9"); e(f"v_cmp_ge_u32 s[{sM+4}:{sM+5}], 2, v9")
    e("s_waitcnt lgkmcnt(15)")
    for s_ in range(5):
        for kb in range(3):
            e(f"v_mfma_f32_4x4x4_16b_bf16 v[{S+4*kb}:{S+4*kb+3}], v[{K+10*kb+2*s_}:{K+10*kb+2*s_+1}], v[{Q+2*s_}:{Q+2*s_+1}], v[{S+4*kb}:{S+4*kb+3}]")
    Y = 124
    e(f"v_cndmask_b32 v{Y}, v{S+9}, v{S+1}, s[{sM}:{sM+1}]")
    e(f"v_cndmask_b32 v{Y+1}, v{S+10}, v{S+2}, s[{sM+2}:{sM+3}]")
    e(f"v_cndmask_b32 v{Y+2}, v{S+11}, v{S+3}, s[{sM+4}:{sM+5}]")
    ys = [Y, Y+1, Y+2, S+4, S+5, S+6, S+7, S+8]
    e(f"s_cmp_eq_u32 s{sRB}, 0"); e("s_cbranch_scc0 L_nomask")
    e("v_and_b32 v9, 60, v1"); e("v_sub_u32 v9, 15, v9")
    e(f"v_mov_b32 v10, 0xf149f2ca")
    for n, reg in ((4, S+4), (5, S+5), (6, S+6), (7, S+7), (8, S+8)):
        e(f"v_cmp_lt_i32 vcc, {n}, v9"); e(f"v_cndmask_b32 v{reg}, v{reg}, v10, vcc")
    for n, reg, m in ((1, Y, sM), (2, Y+1, sM+2), (3, Y+2, sM+4)):
        e(f"v_mov_b32 v11, {n+8}"); e(f"v_cndmask_b32 v11, v11, {n}, s[{m}:{m+1}]")
        e(f"v_cmp_lt_i32 vcc, v11, v9"); e(f"v_cndmask_b32 v{reg}, v{reg}, v10, vcc")
    e.label("L_nomask")
    e(f"v_max3_f32 v9, v{ys[0]}, v{ys[1]}, v{ys[2]}"); e(f"v_max3_f32 v10, v{ys[3]}, v{ys[4]}, v{ys[5]}")
    e(f"v_max3_f32 v9, v9, v{ys[6]}, v{ys[7]}"); e("v_max_f32 v9, v9, v10")
    CS = 0.22360679774997896 * 1.4426950408889634
    import struct
    csb = struct.unpack('<I', struct.pack('<f', CS))[0]
    e(f"s_mov_b32 s{T4}, {csb}")
    e(f"v_mul_f32 v9, s{T4}, v9")
    for y in ys: e(f"v_fma_f32 v{y}, v{y}, s{T4}, -v9")
    for y in ys: e(f"v_exp_f32 v{y}, v{y}")
    e(f"v_add_f32 v9, v{ys[0]}, v{ys[1]}"); e(f"v_add_f32 v10, v{ys[2]}, v{ys[3]}")
    e(f"v_add_f32 v11, v{ys[4]}, v{ys[5]}"); e(f"v_add_f32 v12, v{ys[6]}, v{ys[7]}")
    e("v_add_f32 v9, v9, v10"); e("v_add_f32 v11, v11, v12"); e("v_add_f32 v9, v9, v11")
    e("v_rcp_f32 v9, v9")
    for y in ys: e(f"v_mul_f32 v{y}, v{y}, v9")
    P = 128
    e(f"v_cndmask_b32 v{S+1}, 0, v{Y}, s[{sM}:{sM+1}]"); e(f"v_cndmask_b32 v{S+9}, v{Y}, 0, s[{sM}:{sM+1}]")
    e(f"v_cndmask_b32 v{S+2}, 0, v{Y+1}, s[{sM+2}:{sM+3}]"); e(f"v_cndmask_b32 v{S+10}, v{Y+1}, 0, s[{sM+2}:{sM+3}]")
    e(f"v_cndmask_b32 v{S+3}, 0, v{Y+2}, s[{sM+4}:{sM+5}]"); e(f"v_cndmask_b32 v{S+11}, v{Y+2}, 0, s[{sM+4}:{sM+5}]")
    e(f"v_mov_b32 v{S}, 0")
    for kb in range(3):
        e(f"v_cvt_pk_bf16_f32 v{P+2*kb}, v{S+4*kb}, v{S+4*kb+1}"); e(f"v_cvt_pk_bf16_f32 v{P+2*kb+1}, v{S+4*kb+2}, v{S+4*kb+3}")
    e("s_waitcnt lgkmcnt(0)")
    for kb in range(3):
        for dg in range(5):
            e(f"v_mfma_f32_4x4x4_16b_bf16 v[{O+4*dg}:{O+4*dg+3}], v[{V+10*kb+2*dg}:{V+10*kb+2*dg+1}], v[{P+2*kb}:{P+2*kb+1}], v[{O+4*dg}:{O+4*dg+3}]")
    e(f"s_mul_i32 s{T2}, s{T1}, {64*PO}"); e(f"s_mul_i32 s{T3}, s{T0}, 40"); e(f"s_add_u32 s{T2}, s{T2}, s{T3}"); e(f"s_add_u32 s{T2}, s{T2}, {OB}")
    e(f"v_mul_u32_u24 v2, {PO}, v1"); e(f"v_add_u32 v2, s{T2}, v2")
    for dg in range(5):
        e(f"v_cvt_pk_bf16_f32 v{Q+2*dg}, v{O+4*dg}, v{O+4*dg+1}"); e(f"v_cvt_pk_bf16_f32 v{Q+2*dg+1}, v{O+4*dg+2}, v{O+4*dg+3}")
        e(f"ds_write_b64 v2, v[{Q+2*dg}:{Q+2*dg+1}] offset:{8*dg}")
    e("s_waitcnt lgkmcnt(0)")
    e("s_barrier")
    for r in range(3):
        if r == 2:
            e(f"s_cmp_ge_u32 s{sWAVE}, 4"); e("s_cbranch_scc1 L_ostore_done")
        e(f"s_add_u32 s{T0}, s{sWAVE}, {8*r}"); e(f"s_lshr_b32 s{T1}, s{T0}, 1"); e(f"s_and_b32 s{T0}, s{T0}, 1")
        e(f"s_lshl_b32 s{T2}, s{T0}, 6")
        e(f"v_add_u32 v2, s{T2}, v1")
        e("v_add_u32 v3, 14, v2")
        e("v_and_b32 v4, 1, v3"); e("v_lshrrev_b32 v5, 1, v3"); e("v_lshl_add_u32 v4, v4, 6, v5")
        e("v_min_u32 v4, 127, v4")
        e(f"v_mul_u32_u24 v4, {PO}, v4"); e(f"s_lshl_b32 s{T3}, s{T1}, 4"); e(f"s_add_u32 s{T3}, s{T3}, {OB}")
        e(f"v_add_u32 v4, s{T3}, v4")
        e(f"ds_read_b128 v[8:11], v4")
        e(f"s_add_u32 s{T3}, s{sT0}, 14"); e(f"v_add_u32 v5, s{T3}, v2")
        e(f"s_mul_i32 s{T4}, s{sCG}, 10"); e(f"s_add_u32 s{T4}, s{T4}, s{T1}")
        e(f"s_lshr_b32 s{T5}, s{T4}, 2"); e(f"s_and_b32 s{T4}, s{T4}, 3")
        e(f"s_lshl_b32 s{T5}, s{T5}, 12"); e(f"s_lshl_b32 s{T4}, s{T4}, 8"); e(f"s_add_u32 s{T5}, s{T5}, s{T4}"); e(f"s_add_u32 s{T5}, s{T5}, {OP_OFF}")
        e("v_lshrrev_b32 v6, 6, v5"); e(f"v_mul_u32_u24 v6, {20*4096}, v6")
        e("v_bfe_u32 v7, v5, 4, 2"); e("v_lshl_add_u32 v6, v7, 10, v6")
        e("v_and_b32 v7, 15, v5"); e("v_lshl_add_u32 v6, v7, 4, v6")
        e(f"v_cmp_gt_u32 vcc, 114, v2"); e(f"s_mov_b64 s[{sM}:{sM+1}], vcc"); e(f"v_cmp_gt_u32 vcc, 2048, v5"); e(f"s_and_b64 vcc, vcc, s[{sM}:{sM+1}]")
        e(f"v_mov_b32 v7, {BIG}"); e("s_nop 1"); e("v_cndmask_b32 v6, v7, v6, vcc")
        e("s_waitcnt lgkmcnt(0)")
        e(f"buffer_store_dwordx4 v[8:11], v6, s[{WS}:{WS+3}], s{T5} offen sc1")
    e.label("L_ostore_done")

    e.label("L_p1_store_done")
    e("s_waitcnt vmcnt(0)")
    e("s_barrier")
    stamp(4)
    e(f"s_cmp_eq_u32 s{sWAVE}, 0"); e("s_cbranch_scc0 L_flag_done")
    e(f"s_mov_b32 s{T0}, 0x40000")
    e.label("L_chk")
    e(f"v_cmp_eq_u32 vcc, 1, v232"); e("s_cbranch_vccnz L_chk_ok")
    e("v_mov_b32 v233, 0")
    e(f"buffer_load_dword v232, v233, s[{DBG}:{DBG+3}], 0 offen sc1"); e("s_waitcnt vmcnt(0)")
    e(f"s_sub_u32 s{T0}, s{T0}, 1"); e(f"s_cmp_lg_u32 s{T0}, 0"); e("s_cbranch_scc1 L_chk")
    e.label("L_chk_ok")
    e(f"s_lshl_b32 s{T0}, s{sFLAG}, 6"); e(f"s_add_u32 s{T0}, s{T0}, {FL_OFF}")
    e("v_mov_b32 v233, 0"); e("v_mov_b32 v234, 1")
    e(f"s_mov_b64 s[{sEX}:{sEX+1}], exec"); e("s_mov_b64 exec, 1")
    e(f"buffer_store_dword v234, v233, s[{WS}:{WS+3}], s{T0} offen sc1")
    e(f"s_mov_b64 exec, s[{sEX}:{sEX+1}]")
    e.label("L_flag_done")
    if o['stop'] == 'p1':
        e("s_branch L_fin")
    else:
        e("s_branch L_phase3")

    e.label("L_loader")
    vm = VM(e)
    vx0, vx1, vw0, vw1 = 2, 3, 4, 5
    e(f"s_sub_u32 s{sLW}, s{sWAVE}, 4")
    srd(e, M1, 24, 1280)
    e(f"s_mul_i32 s{T0}, s{sLW}, 160")
    e(f"v_add_u32 v20, s{T0}, v1"); e("v_add_u32 v21, 64, v20"); e("v_and_b32 v22, 31, v1"); e(f"v_add_u32 v22, s{T0}, v22"); e("v_add_u32 v22, 128, v22")
    for k in range(3): e(f"v_lshlrev_b32 v{24+k}, 1, v{20+k}")
    stamp(9)
    for k in range(3):
        e(f"buffer_load_ushort v{28+k}, v{24+k}, s[{M1}:{M1+3}], 0 offen"); vm.issue('gate')
    e(f"s_lshl_b32 s{T0}, s2, 2"); e(f"s_add_u32 s{T0}, s{T0}, s{sLW}")
    e(f"s_mul_i32 s{T1}, s{T0}, 205"); e(f"s_lshr_b32 s{T1}, s{T1}, 11")
    e(f"s_mul_i32 s{T2}, s{T1}, 10"); e(f"s_sub_u32 s{T2}, s{T0}, s{T2}")
    e(f"s_cmp_lt_u32 s{T1}, 20")
    e(f"s_cselect_b32 s{M2}, s12, s20"); e(f"s_cselect_b32 s{T3}, s13, s21")
    csel(e, M2+2, 640*1280, 1728*1280)
    e(f"s_cselect_b32 s{T4}, 0, 20")
    e(f"s_and_b32 s{M2+1}, s{T3}, 0xffff"); e(f"s_mov_b32 s{M2+3}, 0x20000")
    e(f"s_sub_u32 s{T4}, s{T1}, s{T4}"); e(f"s_mul_i32 s{T4}, s{T4}, {32*1280}")
    e("v_lshrrev_b32 v6, 3, v1"); e("v_mul_u32_u24 v6, 1280, v6"); e("v_and_b32 v7, 7, v1"); e("v_lshl_add_u32 v6, v7, 4, v6")
    e(f"s_lshl_b32 s{T5}, s{T2}, 7"); e(f"v_add_u32 v6, s{T5}, v6")
    e(f"s_cmp_lt_u32 s{T0}, 740"); e(f"s_cselect_b32 s{T6}, 0, {BIG}")
    e(f"v_or_b32 v6, s{T6}, v6")
    e(f"s_lshl_b32 s{T5}, s{sLW}, 12"); e(f"s_add_u32 s{T5}, s{T5}, {RSCR}")
    for d in range(4):
        e(f"s_add_u32 m0, s{T5}, {d*1024}")
        e(f"buffer_load_dwordx4 v6, s[{M2}:{M2+3}], s{T4} offen lds"); vm.issue('rp')
        e(f"s_add_u32 s{T4}, s{T4}, {8*1280}")
    sID, sS, sC10, sSCR, sINV = 84 + 0, 85, 90, 91, 92
    e(f"s_mov_b32 s{sID}, s{T0}"); e(f"s_mov_b32 s{sS}, s{T1}"); e(f"s_mov_b32 s{sC10}, s{T2}"); e(f"s_mov_b32 s{sSCR}, s{T5}"); e(f"s_mov_b32 s{sINV}, s{T6}")
    e("v_lshrrev_b32 v8, 2, v1")
    e("v_lshrrev_b32 v9, 4, v1"); e("v_sub_u32 v9, 0, v9"); e("v_and_b32 v9, 3, v9")
    e("v_and_b32 v10, 3, v1"); e("v_xor_b32 v9, v9, v10"); e("v_lshlrev_b32 v9, 4, v9")
    e(f"s_cmp_eq_u32 s{sISA}, 1"); e(f"s_cselect_b32 s{T0}, 1, 0")
    e(f"v_lshlrev_b32 v8, s{T0}, v8")
    for tt in range(2):
        e(f"s_lshl_b32 s{T1}, s{sLW}, 1"); e(f"s_add_u32 s{T1}, s{T1}, {tt}")
        e(f"s_and_b32 s{T2}, s{T1}, 3"); e(f"s_lshl_b32 s{T2}, s{T2}, 5"); e(f"s_lshr_b32 s{T3}, s{T1}, 2")
        e(f"s_add_u32 s{T2}, s{T2}, s{T3}"); e(f"s_add_u32 s{T2}, s{T2}, s{sT0}")
        e(f"s_lshl_b32 s{T3}, s{sRB}, 7"); e(f"s_lshl_b32 s{T4}, s{T1}, 4"); e(f"s_add_u32 s{T3}, s{T3}, s{T4}")
        e(f"s_cmp_eq_u32 s{sISA}, 1"); e(f"s_cselect_b32 s{T2}, s{T2}, s{T3}")
        e(f"v_add_u32 v10, s{T2}, v8")
        e(f"v_mul_u32_u24 v11, 1280, v10"); e("v_add_u32 v11, v11, v9")
        e(f"v_cmp_gt_u32 vcc, 2048, v10"); e(f"v_mov_b32 v12, {BIG}"); e("s_nop 0")
        e(f"v_cndmask_b32 v{vx0+tt}, v12, v11, vcc")
    e("v_lshrrev_b32 v8, 2, v1"); e(f"v_mul_lo_u32 v8, v8, s{sPITCH}")
    e("v_and_b32 v9, 1, v1"); e("v_lshl_add_u32 v8, v9, 4, v8")
    e("v_lshrrev_b32 v9, 1, v1"); e("v_lshrrev_b32 v10, 5, v1"); e("v_xor_b32 v9, v9, v10"); e("v_and_b32 v9, 1, v9")
    e("v_cmp_eq_u32 vcc, 1, v9")
    e(f"s_mov_b64 s[94:95], vcc")
    for pp in range(2):
        e(f"s_lshl_b32 s{T1}, s{sLW}, 1"); e(f"s_add_u32 s{T1}, s{T1}, {pp}")
        e(f"s_lshl_b32 s{T2}, s{sCG}, 9"); e(f"s_lshl_b32 s{T3}, s{T1}, 6"); e(f"s_add_u32 s{T2}, s{T2}, s{T3}")
        e(f"s_add_u32 s{T3}, s{T2}, 32")
        e(f"s_cmp_ge_u32 s{T2}, 3456"); e(f"s_cselect_b32 s{T2}, {BIG}, s{T2}"); e(f"s_cselect_b32 s{T3}, {BIG}, s{T3}")
        e(f"s_cmp_eq_u32 s{sISA}, 1"); lab = e.newlabel('wB'); e(f"s_cbranch_scc0 {lab}")
        e(f"s_mul_i32 s{T4}, s{sCG}, 160")
        lab6 = e.newlabel('p6'); e(f"s_cmp_lt_u32 s{T1}, 6"); e(f"s_cbranch_scc0 {lab6}")
        e(f"s_lshr_b32 s{T2}, s{T1}, 1"); e(f"s_mul_i32 s{T2}, s{T2}, 1280"); e(f"s_add_u32 s{T2}, s{T2}, s{T4}")
        e(f"s_and_b32 s{T3}, s{T1}, 1"); e(f"s_lshl_b32 s{T3}, s{T3}, 6"); e(f"s_add_u32 s{T2}, s{T2}, s{T3}")
        e(f"s_lshl_b32 s{T3}, s{sODD}, 5"); e(f"s_add_u32 s{T2}, s{T2}, s{T3}"); e(f"s_add_u32 s{T3}, s{T2}, 32")
        e(f"s_branch {lab}")
        e.label(lab6)
        e(f"s_cmp_eq_u32 s{sODD}, 1"); e(f"s_cselect_b32 s{T2}, 0, 128"); e(f"s_add_u32 s{T2}, s{T2}, s{T4}")
        e(f"s_add_u32 s{T3}, s{T2}, 1280")
        e(f"s_cmp_eq_u32 s{T1}, 7"); lab7 = e.newlabel('p7'); e(f"s_cbranch_scc0 {lab}")
        e(f"s_add_u32 s{T2}, s{T2}, 2560"); e(f"s_mov_b32 s{T3}, {BIG}")
        e.label(lab)
        e(f"v_mov_b32 v10, s{T2}"); e(f"v_mov_b32 v11, s{T3}")
        e(f"v_cndmask_b32 v10, v10, v11, s[94:95]")
        e(f"v_add_u32 v{vw0+pp}, v10, v8")
    e(f"s_lshl_b32 s{sLX}, s{sLW}, 11"); e(f"s_lshl_b32 s{sLWb}, s{sLW}, 12"); e(f"s_add_u32 s{sLWb}, s{sLWb}, 8192")
    e(f"s_mov_b32 s{sKX}, 0"); e(f"s_mov_b32 s{sKW0}, 0"); e(f"s_lshl_b32 s{sKW1}, s{sPITCH}, 4")
    e(f"s_lshl_b32 s{T7}, s{sPITCH}, 5")
    def stage(j):
        slot = (j % NS) * STAGE
        for tt in range(2):
            e(f"s_add_u32 m0, s{sLX}, {slot + tt*1024}")
            e(f"buffer_load_dwordx4 v{vx0+tt}, s[{X}:{X+3}], s{sKX} offen lds"); vm.issue(f'st{j}')
        for pp in range(2):
            for hf in range(2):
                e(f"s_add_u32 m0, s{sLWb}, {slot + pp*2048 + hf*1024}")
                e(f"buffer_load_dwordx4 v{vw0+pp}, s[{W}:{W+3}], s{sKW1 if hf else sKW0} offen lds"); vm.issue(f'st{j}')
        e(f"s_add_u32 s{sKX}, s{sKX}, 64"); e(f"s_add_u32 s{sKW0}, s{sKW0}, s{T7}"); e(f"s_add_u32 s{sKW1}, s{sKW1}, s{T7}")
    stamp(10)
    for j in range(NS):
        stage(j)
        if j == 0: stamp(11)
    stamp(1)
    vm.wait('gate')
    stamp(12)
    for k in range(3):
        e(f"v_lshl_or_b32 v32, v{28+k}, 16, v{28+k}"); e("v_mov_b32 v33, v32")
        e(f"v_lshlrev_b32 v34, 3, v{20+k}"); e(f"v_add_u32 v34, {GATE4}, v34"); e(f"ds_write_b64 v34, v[32:33]")
    e("v_lshrrev_b32 v7, 4, v1"); e("v_bfe_u32 v8, v1, 2, 2"); e("v_and_b32 v9, 3, v1")
    e(f"s_cmp_lt_u32 s{sS}, 20"); e(f"s_cselect_b32 s{T0}, 3, 2"); csel(e, T1, 512, 2048)
    e(f"v_lshlrev_b32 v10, s{T0}, v7"); e("v_add_u32 v10, v10, v8")
    e("v_lshlrev_b32 v10, 7, v10"); e("v_lshl_add_u32 v10, v9, 3, v10"); e(f"v_add_u32 v10, s{sSCR}, v10")
    e(f"v_add_u32 v11, s{T1}, v10")
    vm.wait('rp')
    stamp(13)
    for tt in range(4):
        e(f"ds_read_b64_tr_b16 v[{40+4*tt}:{41+4*tt}], v10 offset:{32*tt}")
        e(f"ds_read_b64_tr_b16 v[{42+4*tt}:{43+4*tt}], v11 offset:{32*tt}")
    e("v_lshlrev_b32 v12, 4, v1"); e(f"v_or_b32 v12, s{sINV}, v12")
    e("s_waitcnt lgkmcnt(0)")
    for tt in range(4):
        e(f"s_lshl_b32 s{T0}, s{sC10}, 2"); e(f"s_add_u32 s{T0}, s{T0}, {tt}")
        e(f"s_mul_i32 s{T1}, s{T0}, 52"); e(f"s_lshr_b32 s{T1}, s{T1}, 8")
        e(f"s_mul_i32 s{T2}, s{T1}, 5"); e(f"s_sub_u32 s{T2}, s{T0}, s{T2}")
        e(f"s_mul_i32 s{T1}, s{T1}, 74"); e(f"s_add_u32 s{T1}, s{T1}, s{sS}"); e(f"s_mul_i32 s{T1}, s{T1}, 5")
        e(f"s_add_u32 s{T1}, s{T1}, s{T2}"); e(f"s_lshl_b32 s{T1}, s{T1}, 10"); e(f"s_add_u32 s{T1}, s{T1}, {WP_OFF}")
        e(f"s_and_b32 s{T1}, s{T1}, 0x00ffffff")
        e(f"buffer_store_dwordx4 v[{40+4*tt}:{43+4*tt}], v12, s[{WS}:{WS+3}], s{T1} offen sc1"); vm.issue('rps')
    vm.wait('st0')
    stamp(14)
    e("s_barrier")
    vm.wait('st1')
    e("s_barrier")
    for j in range(20):
        if j + NS < 20: stage(j + NS)
        if j == 4:
            e(f"s_lshl_b32 s{T0}, s2, 0"); e(f"s_and_b32 s{T0}, s{T0}, 31"); e(f"s_lshl_b32 s{T0}, s{T0}, 2"); e(f"s_add_u32 s{T0}, s{T0}, 128")
            e(f"v_mov_b32 v13, s{T0}"); e("v_mov_b32 v14, 1")
            e(f"s_cmp_lt_u32 s2, 185"); e(f"s_cselect_b32 s{T1}, 0, {BIG}"); e(f"s_cmp_eq_u32 s{sLW}, 0"); e(f"s_cselect_b32 s{T1}, s{T1}, {BIG}")
            e(f"v_or_b32 v13, s{T1}, v13"); e(f"v_mov_b32 v15, {BIG}"); e("v_cmp_eq_u32 vcc, 0, v1"); e("s_nop 1")
            e("v_cndmask_b32 v13, v15, v13, vcc")
            e(f"buffer_atomic_add v14, v13, s[{DBG}:{DBG+3}], 0 offen"); vm.issue('atom')
        if j + 2 < 20:
            vm.wait(f'st{j+2}')
            if j == 3: assert 'rps' not in vm.q
        e("s_barrier")
    stamp(2)
    e(f"s_cmp_eq_u32 s{sISA}, 1"); e("s_cbranch_scc1 L_attn")
    e("s_branch L_p1_store_done")

    e.label("L_phase3")
    A3 = 8; FB = 88; ND = 4
    e(f"s_cmp_ge_u32 s{sWAVE}, 4"); e(f"s_cselect_b32 s{T0}, 6, -2")
    e(f"s_sub_u32 s{T0}, s{sWAVE}, s{T0}")
    e(f"s_add_u32 s{T1}, s{sWAVE}, -4"); e(f"s_cmp_lt_u32 s{T1}, 2"); e("s_cbranch_scc1 L_p3_roleA")
    e(f"s_mul_i32 s{T2}, s{T0}, 9")
    e(f"s_mul_i32 s{sACT}, s{sI3}, 54"); e(f"s_add_u32 s{sACT}, s{sACT}, s{T2}"); e(f"s_lshl_b32 s{sACT}, s{sACT}, 12")
    if HP_OFF: e(f"s_add_u32 s{sACT}, s{sACT}, {HP_OFF}")
    e(f"s_add_u32 s{T3}, s{T2}, 20")
    e(f"s_mov_b32 s{T6}, {BIG}")
    e(f"s_lshr_b32 s{T4}, s{sI3}, 1"); e(f"s_mul_i32 s{T4}, s{T4}, 7"); e(f"s_add_u32 s{T4}, s{T4}, 144")
    e(f"s_lshr_b32 s{T5}, s{T2}, 3"); e(f"s_add_u32 s{T5}, s{T5}, s{T4}")
    e(f"s_add_u32 s{T2}, s{T2}, 8"); e(f"s_lshr_b32 s{T2}, s{T2}, 3"); e(f"s_add_u32 s{T2}, s{T2}, s{T4}")
    e(f"v_mov_b32 v2, s{T5}"); e(f"v_mov_b32 v3, s{T2}"); e("v_cmp_gt_u32 vcc, 4, v1"); e("s_nop 1"); e("v_cndmask_b32 v2, v3, v2, vcc")
    e("s_branch L_p3_role_done")
    e.label("L_p3_roleA")
    e(f"s_mul_i32 s{T3}, s{T1}, 10")
    e(f"s_mul_i32 s{sACT}, s{sI3}, 20"); e(f"s_add_u32 s{sACT}, s{sACT}, s{T3}"); e(f"s_lshl_b32 s{sACT}, s{sACT}, 12"); e(f"s_add_u32 s{sACT}, s{sACT}, {OP_OFF}")
    e(f"s_mov_b32 s{T6}, 0")
    e(f"s_lshl_b32 s{T4}, s{sI3}, 6"); e(f"s_mul_i32 s{T5}, s{T4}, 575"); e(f"s_lshr_b32 s{T5}, s{T5}, 16")
    e(f"s_add_u32 s{T4}, s{T4}, 63"); e(f"s_mul_i32 s{T4}, s{T4}, 575"); e(f"s_lshr_b32 s{T4}, s{T4}, 16")
    e(f"s_lshl_b32 s{T5}, s{T5}, 3"); e(f"s_lshl_b32 s{T4}, s{T4}, 3"); e(f"s_lshl_b32 s{T1}, s{T1}, 2")
    e(f"s_add_u32 s{T5}, s{T5}, s{T1}"); e(f"s_add_u32 s{T4}, s{T4}, s{T1}")
    e(f"v_mov_b32 v2, s{T5}"); e(f"v_mov_b32 v3, s{T4}"); e("v_cmp_gt_u32 vcc, 4, v1"); e("s_nop 1"); e("v_cndmask_b32 v2, v3, v2, vcc")
    e("v_and_b32 v3, 3, v1"); e("v_add_u32 v2, v2, v3")
    e.label("L_p3_role_done")
    e(f"s_mul_i32 s{sWP}, s{sJ3}, 74"); e(f"s_add_u32 s{sWP}, s{sWP}, s{T3}"); e(f"s_mul_i32 s{sWP}, s{sWP}, 5120"); e(f"s_add_u32 s{sWP}, s{sWP}, {WP_OFF}")
    e(f"s_add_u32 s{sWP4}, s{sWP}, 4096")
    e("v_lshlrev_b32 v4, 4, v1"); e(f"v_or_b32 v5, s{T6}, v4")
    e("v_lshlrev_b32 v2, 6, v2"); e(f"v_mov_b32 v3, {BIG}"); e("v_cmp_gt_u32 vcc, 8, v1"); e("s_nop 1"); e("v_cndmask_b32 v2, v3, v2, vcc")
    e("v_lshlrev_b32 v6, 2, v1"); e("v_add_u32 v6, 128, v6"); e("v_cmp_gt_u32 vcc, 32, v1"); e("s_nop 1"); e("v_cndmask_b32 v6, v3, v6, vcc")
    e("v_mov_b32 v7, 5"); e("v_cmp_gt_u32 vcc, 25, v1"); e("s_nop 1"); e("v_cndmask_b32 v7, v7, 6, vcc")
    e("v_cmp_gt_u32 vcc, 32, v1"); e("s_nop 1"); e("v_cndmask_b32 v7, 0, v7, vcc")
    e(f"s_mov_b32 s{T0}, 0x40000"); e(f"s_mov_b32 s{T1}, {FL_OFF}")
    e.label("L_poll_rp")
    e(f"buffer_load_dword v88, v6, s[{DBG}:{DBG+3}], 0 offen sc1"); e("s_waitcnt vmcnt(0)")
    e("v_cmp_ne_u32 vcc, v88, v7"); e("s_cbranch_vccz L_poll_rp_ok")
    e(f"s_sub_u32 s{T0}, s{T0}, 1"); e(f"s_cmp_lg_u32 s{T0}, 0"); e("s_cbranch_scc1 L_poll_rp")
    e.label("L_poll_rp_ok")
    e("v_mov_b32 v7, 0"); e("v_cmp_gt_u32 vcc, 8, v1"); e("s_nop 1"); e("v_cndmask_b32 v7, 0, 1, vcc")
    e.label("L_poll")
    e(f"buffer_load_dword v88, v2, s[{WS}:{WS+3}], s{T1} offen sc1"); e("s_waitcnt vmcnt(0)")
    e("v_cmp_ne_u32 vcc, v88, v7"); e("s_cbranch_vccz L_poll_ok")
    e(f"s_sub_u32 s{T0}, s{T0}, 1"); e(f"s_cmp_lg_u32 s{T0}, 0"); e("s_cbranch_scc1 L_poll")
    e.label("L_poll_ok")
    stamp(5)
    for r in range(80): e(f"v_mov_b32 v{A3+r}, 0")
    vm3 = VM(e)
    def loads3(s_):
        b = FB + 36 * (s_ % ND)
        vo = 5 if s_ == 9 else 4
        for mt in range(4):
            e(f"buffer_load_dwordx4 v[{b+4*mt}:{b+4*mt+3}], v{vo}, s[{WS}:{WS+3}], s{sACT} offen offset:{mt*1024} sc1"); vm3.issue(f's{s_}')
        for t in range(5):
            if t < 4: e(f"buffer_load_dwordx4 v[{b+16+4*t}:{b+16+4*t+3}], v{vo}, s[{WS}:{WS+3}], s{sWP} offen offset:{t*1024} sc1")
            else: e(f"buffer_load_dwordx4 v[{b+16+4*t}:{b+16+4*t+3}], v{vo}, s[{WS}:{WS+3}], s{sWP4} offen sc1")
            vm3.issue(f's{s_}')
        e(f"s_add_u32 s{sACT}, s{sACT}, 4096"); e(f"s_add_u32 s{sWP}, s{sWP}, 5120"); e(f"s_add_u32 s{sWP4}, s{sWP4}, 5120")
    for s_ in range(ND - 1): loads3(s_)
    for s_ in range(10):
        if s_ + ND - 1 < 10: loads3(s_ + ND - 1)
        vm3.wait(f's{s_}')
        b = FB + 36 * (s_ % ND)
        for t in range(5):
            for mt in range(4):
                a = A3 + (t * 4 + mt) * 4
                e(f"v_mfma_f32_16x16x32_bf16 v[{a}:{a+3}], v[{b+16+4*t}:{b+16+4*t+3}], v[{b+4*mt}:{b+4*mt+3}], v[{a}:{a+3}]")
    stamp(6)
    e(f"s_mul_i32 s{T0}, s{sWAVE}, 20480"); e(f"v_add_u32 v2, s{T0}, v4")
    e("s_nop 4")
    for tau in range(20): e(f"ds_write_b128 v2, v[{A3+4*tau}:{A3+4*tau+3}] offset:{tau*1024}")
    e("s_waitcnt lgkmcnt(0)")
    e("s_barrier")
    srd(e, M1, 26, 2048 * 1280)
    srd(e, M2, 22, 1280)
    for r in range(3):
        if r == 2:
            e(f"s_cmp_ge_u32 s{sWAVE}, 4"); e("s_cbranch_scc1 L_fin")
        e(f"s_add_u32 s{T0}, s{sWAVE}, {8*r}"); e(f"s_lshr_b32 s{T1}, s{T0}, 2"); e(f"s_and_b32 s{T2}, s{T0}, 3")
        e(f"s_lshl_b32 s{T3}, s{T0}, 10"); e(f"v_add_u32 v2, s{T3}, v4")
        for w in range(8):
            off = w * 20480
            if off < 65536: e(f"ds_read_b128 v[{8+4*w}:{11+4*w}], v2 offset:{off}")
            else:
                if w == 4: e("v_add_u32 v3, 0x14000, v2")
                e(f"ds_read_b128 v[{8+4*w}:{11+4*w}], v3 offset:{off - 0x14000}")
        e("v_and_b32 v40, 15, v1"); e(f"s_lshl_b32 s{T4}, s{sI3}, 6"); e(f"s_lshl_b32 s{T5}, s{T2}, 4"); e(f"s_add_u32 s{T4}, s{T4}, s{T5}")
        e(f"v_add_u32 v40, s{T4}, v40")
        e("v_lshlrev_b32 v41, 2, v40"); e(f"s_mov_b32 s{T5}, {G_OFF}")
        e(f"buffer_load_dword v42, v41, s[{WS}:{WS+3}], s{T5} offen sc1")
        e("v_lshrrev_b32 v43, 4, v1"); e(f"s_mul_i32 s{T4}, s{sJ3}, 160"); e(f"s_lshl_b32 s{T5}, s{T1}, 5"); e(f"s_add_u32 s{T4}, s{T4}, s{T5}")
        e("v_lshlrev_b32 v43, 3, v43"); e(f"v_add_u32 v43, s{T4}, v43")
        e(f"buffer_load_dwordx2 v[44:45], v43, s[{M2}:{M2+3}], 0 offen")
        e("v_mul_u32_u24 v46, 1280, v40"); e("v_add_u32 v46, v46, v43")
        e("s_waitcnt lgkmcnt(0)")
        for q in range(4):
            e(f"v_add_f32 v{48+q}, v{8+16+q}, v{8+20+q}")
            e(f"v_add_f32 v{8+q}, v{8+q}, v{8+4+q}"); e(f"v_add_f32 v{8+8+q}, v{8+8+q}, v{8+12+q}")
            e(f"v_add_f32 v{8+24+q}, v{8+24+q}, v{8+28+q}")
            e(f"v_add_f32 v{8+q}, v{8+q}, v{8+8+q}"); e(f"v_add_f32 v{8+q}, v{8+q}, v{8+24+q}")
        e("s_waitcnt vmcnt(0)")
        e("v_lshlrev_b32 v52, 16, v44"); e("v_and_b32 v53, 0xffff0000, v44"); e("v_lshlrev_b32 v54, 16, v45"); e("v_and_b32 v55, 0xffff0000, v45")
        e("v_sub_f32 v56, 1.0, v42")
        for q in range(4):
            e(f"v_add_f32 v{8+q}, v{8+q}, v{52+q}"); e(f"v_mul_f32 v{8+q}, v{8+q}, v56"); e(f"v_fma_f32 v{8+q}, v{48+q}, v42, v{8+q}")
        e("v_cvt_pk_bf16_f32 v58, v8, v9"); e("v_cvt_pk_bf16_f32 v59, v10, v11")
        e(f"buffer_store_dwordx2 v[58:59], v46, s[{M1}:{M1+3}], 0 offen")
    e.label("L_fin")
    if o['ts']:
        stamp(7)
        e(f"s_lshl_b32 s{T0}, s2, 3"); e(f"s_add_u32 s{T0}, s{T0}, s{sWAVE}"); e(f"s_lshl_b32 s{T0}, s{T0}, 6"); e(f"s_add_u32 s{T0}, s{T0}, {TS_OFF}")
        e("v_and_b32 v1, 63, v0")
        e("v_lshlrev_b32 v2, 2, v1"); e("s_mov_b64 exec, 0xffff")
        e(f"buffer_store_dword v255, v2, s[{WS}:{WS+3}], s{T0} offen")
    e.label("L_end")
    body, nh = e.text()
    hdr = open('gated_mix__sliding_local_dilated__dense_activation_squared_relu__prompt.s.ref').read().split('\n')
    comments = [l for l in hdr if l.startswith(';') and '@launch' not in l and 'Override launch' not in l and 'grid=ceil' not in l]
    return "\n".join(comments) + f"""
; @launch grid=(256,1,1) block=(512,1,1) lds={LDS_BYTES}
.amdgcn_target "amdgcn-amd-amdhsa--gfx950"
.text
.globl {KNAME}
.p2align 8
.type {KNAME},@function
{KNAME}:
{body}
    s_endpgm
.section .rodata,"a"
.p2align 6
.amdhsa_kernel {KNAME}
  .amdhsa_next_free_vgpr 256
  .amdhsa_next_free_sgpr 102
  .amdhsa_accum_offset 256
  .amdhsa_group_segment_fixed_size 0
  .amdhsa_kernarg_size 96
  .amdhsa_user_sgpr_count 2
  .amdhsa_user_sgpr_kernarg_segment_ptr 1
  .amdhsa_system_sgpr_workgroup_id_x 1
.end_amdhsa_kernel
"""

if __name__ == "__main__":
    import argparse
    ap = argparse.ArgumentParser()
    ap.add_argument('-o', default='k.s'); ap.add_argument('--stop', default=None); ap.add_argument('--ts', action='store_true')
    a = ap.parse_args()
    open(a.o, 'w').write(gen(dict(stop=a.stop, ts=a.ts)))
```

```python
import sys
from emit import Emitter

KNAME = "gated_mix__sliding_local_dilated__dense_activation_squared_relu__prompt_kernel"

HP_OFF = 0x0
OP_OFF = 0x700000
WP_OFF = 0xA00000
G_OFF = 0xD00000
FL_OFF = 0xD10000
TS_OFF = 0xD20000
WS_SIZE = 0xE00000

NS = 5
STAGE = 24576
GATE4 = NS * STAGE
RSCR = GATE4 + 5632
PQ = 488
OB = 128 * PQ
PO = 176
LDS_BYTES = 163840

BIG = 0x80000000

sP = 2
sWAVE, sISA, sRB, sCG = 32, 33, 34, 35
X, W, WS, M1, M2 = 36, 40, 44, 48, 52
T0, T1, T2, T3, T4, T5, T6, T7 = 56, 57, 58, 59, 60, 61, 62, 63
sLW = 64
sKX, sKW0, sKW1, sLX, sLWb = 65, 66, 67, 68, 69
sSLOT, sDELTA, sGD, sIT = 70, 71, 72, 73
sMH, sNH = 74, 75
sT0 = 76
sPITCH = 77
sI3, sJ3 = 78, 79
sACT, sWP, sWP4 = 80, 81, 82
sODD = 83
sFLAG = 84
sTS = 86
sEX = 88
sM = 90
DBG = 96

def srd(e, base, ptr, nbytes):
    e(f"s_mov_b32 s{base}, s{ptr}")
    e(f"s_and_b32 s{base+1}, s{ptr+1}, 0xffff")
    if isinstance(nbytes, int): e(f"s_mov_b32 s{base+2}, {nbytes}")
    else: e(f"s_mov_b32 s{base+2}, {nbytes}")
    e(f"s_mov_b32 s{base+3}, 0x20000")

def csel(e, dst, a, b):
    e(f"s_mov_b32 s{dst}, {b}")
    e(f"s_cselect_b32 s{dst}, {a}, s{dst}")

class VM:
    def __init__(self, e): self.e = e; self.q = []
    def issue(self, tag): self.q.append(tag)
    def wait(self, tag):
        idx = max(i for i, t in enumerate(self.q) if t == tag)
        n = len(self.q) - 1 - idx
        assert n < 64, n
        self.e(f"s_waitcnt vmcnt({n})")
        self.q = self.q[idx + 1:]
    def waitall(self):
        self.e("s_waitcnt vmcnt(0)"); self.q = []

def gen(opts=None):
    o = dict(stop=None, ts=False, span=False)
    if opts: o.update(opts)
    e = Emitter()
    nstamp = [0]
    def stamp(idx):
        if o['span'] and idx in (8, 0, 1, 2, 4, 5, 6, 7, 3):
            e(f"s_memrealtime s[{sTS}:{sTS+1}]"); e("s_waitcnt lgkmcnt(0)")
            e(f"v_writelane_b32 v255, s{sTS}, {idx}")
            return
        if not o['ts']: return
        e(f"s_memrealtime s[{sTS}:{sTS+1}]")
        e("s_waitcnt lgkmcnt(0)")
        e(f"v_writelane_b32 v255, s{sTS}, {idx}")

    e(f"s_cmp_ge_u32 s2, 256")
    e("s_cbranch_scc1 L_end")
    if o['ts'] or o['span']:
        e("v_mov_b32 v255, 0"); stamp(8)
    e("s_load_dwordx16 s[8:23], s[0:1], 0")
    e("s_load_dwordx8 s[24:31], s[0:1], 64")
    e("v_and_b32 v1, 63, v0")
    e("v_lshrrev_b32 v2, 6, v0")
    e("s_nop 0")
    e(f"v_readfirstlane_b32 s{sWAVE}, v2")
    e(f"s_and_b32 s{T0}, s2, 7")
    e(f"s_lshr_b32 s{T1}, s2, 3")
    e(f"s_cmp_lt_u32 s{T0}, 4"); e("s_cbranch_scc1 L_role_a4")
    e(f"s_cmp_eq_u32 s{T0}, 4"); e("s_cbranch_scc1 L_role_x4")
    e(f"s_cmp_eq_u32 s{T0}, 7"); e("s_cbranch_scc1 L_role_x7")
    e(f"s_mov_b32 s{sISA}, 0")
    e(f"s_sub_u32 s{T2}, s{T0}, 5"); e(f"s_lshl_b32 s{T2}, s{T2}, 3")
    e(f"s_lshr_b32 s{sRB}, s{T1}, 2"); e(f"s_add_u32 s{sRB}, s{sRB}, s{T2}")
    e(f"s_and_b32 s{sCG}, s{T1}, 3")
    e("s_branch L_role_done")
    e.label("L_role_x7")
    e(f"s_mov_b32 s{sISA}, 0")
    e(f"s_mul_i32 s{sRB}, s{T1}, 43"); e(f"s_lshr_b32 s{sRB}, s{sRB}, 7")
    e(f"s_mul_i32 s{T2}, s{sRB}, 3"); e(f"s_sub_u32 s{sCG}, s{T1}, s{T2}"); e(f"s_add_u32 s{sCG}, s{sCG}, 4")
    e("s_branch L_role_done")
    e.label("L_role_x4")
    e(f"s_cmp_lt_u32 s{T1}, 16"); e("s_cbranch_scc0 L_role_x4b")
    e(f"s_mov_b32 s{sISA}, 1")
    e(f"s_lshr_b32 s{sRB}, s{T1}, 3"); e(f"s_add_u32 s{sRB}, s{sRB}, 16")
    e(f"s_and_b32 s{sCG}, s{T1}, 7")
    e("s_branch L_role_done")
    e.label("L_role_x4b")
    e(f"s_mov_b32 s{sISA}, 0")
    e(f"s_sub_u32 s{T1}, s{T1}, 16")
    e(f"s_mul_i32 s{sRB}, s{T1}, 43"); e(f"s_lshr_b32 s{sRB}, s{sRB}, 7")
    e(f"s_mul_i32 s{T2}, s{sRB}, 3"); e(f"s_sub_u32 s{sCG}, s{T1}, s{T2}"); e(f"s_add_u32 s{sCG}, s{sCG}, 4")
    e(f"s_add_u32 s{sRB}, s{sRB}, 11")
    e(f"s_cmp_eq_u32 s{T1}, 15")
    e(f"s_cselect_b32 s{sRB}, 10, s{sRB}")
    e(f"s_cselect_b32 s{sCG}, 6, s{sCG}")
    e("s_branch L_role_done")
    e.label("L_role_a4")
    e(f"s_mov_b32 s{sISA}, 1")
    e(f"s_lshr_b32 s{T2}, s{T0}, 1"); e(f"s_lshl_b32 s{T2}, s{T2}, 3")
    e(f"s_lshr_b32 s{sRB}, s{T1}, 2"); e(f"s_add_u32 s{sRB}, s{sRB}, s{T2}")
    e(f"s_and_b32 s{T2}, s{T0}, 1"); e(f"s_lshl_b32 s{T2}, s{T2}, 2")
    e(f"s_and_b32 s{sCG}, s{T1}, 3"); e(f"s_add_u32 s{sCG}, s{sCG}, s{T2}")
    e.label("L_role_done")
    e(f"s_and_b32 s{T0}, s2, 7"); e(f"s_lshr_b32 s{T1}, s2, 3")
    e(f"s_lshl_b32 s{sI3}, s{T0}, 2"); e(f"s_lshr_b32 s{T2}, s{T1}, 3"); e(f"s_add_u32 s{sI3}, s{sI3}, s{T2}")
    e(f"s_and_b32 s{sJ3}, s{T1}, 7")
    e(f"s_and_b32 s{sODD}, s{sCG}, 1")
    e(f"s_mul_i32 s{sT0}, s{sRB}, 114"); e(f"s_sub_u32 s{sT0}, s{sT0}, 14")
    e(f"s_cmp_eq_u32 s{sISA}, 1")
    csel(e, sPITCH, 3840, 3456)
    e(f"s_lshl_b32 s{T2}, s{sRB}, 3"); e(f"s_add_u32 s{T2}, s{T2}, s{sCG}")
    e(f"s_mul_i32 s{T3}, s{sRB}, 7"); e(f"s_add_u32 s{T3}, s{T3}, s{sCG}"); e(f"s_add_u32 s{T3}, s{T3}, 144")
    e(f"s_cmp_eq_u32 s{sISA}, 1")
    e(f"s_cselect_b32 s{sFLAG}, s{T2}, s{T3}")
    e("s_waitcnt lgkmcnt(0)")
    stamp(0)
    srd(e, X, 8, 2048*1280)
    e(f"s_cmp_eq_u32 s{sISA}, 1")
    e(f"s_cselect_b32 s{W}, s10, s16"); e(f"s_cselect_b32 s{T0}, s11, s17")
    csel(e, W+2, 640*3840, 640*3456)
    e(f"s_and_b32 s{W+1}, s{T0}, 0xffff"); e(f"s_mov_b32 s{W+3}, 0x20000")
    srd(e, WS, 30, WS_SIZE)
    srd(e, DBG, 28, 256)
    e(f"s_cmp_ge_u32 s{sWAVE}, 4")
    e("s_cbranch_scc1 L_loader")

    vX, vE, vO, vG0, vG1 = 2, 3, 4, 5, 6
    ACC = 8
    XB = [136, 152]; WB = [168, 200]
    e(f"s_lshr_b32 s{sMH}, s{sWAVE}, 1"); e(f"s_and_b32 s{sNH}, s{sWAVE}, 1")
    e(f"s_cmp_eq_u32 s2, 0"); e("s_cbranch_scc0 L_noclear")
    e(f"s_cmp_eq_u32 s{sWAVE}, 0"); e("s_cbranch_scc0 L_noclear")
    e("v_lshlrev_b32 v8, 6, v1"); e("v_mov_b32 v9, 0")
    for k in range(4):
        e(f"s_mov_b32 s{T0}, {FL_OFF + k*4096}")
        e(f"buffer_store_dword v9, v8, s[{WS}:{WS+3}], s{T0} offen sc1")
    e("s_waitcnt vmcnt(0)")
    e("v_mov_b32 v9, 1"); e("v_mov_b32 v8, 0")
    e(f"s_mov_b64 s[{sEX}:{sEX+1}], exec"); e("s_mov_b64 exec, 1")
    e(f"buffer_store_dword v9, v8, s[{DBG}:{DBG+3}], 0 offen sc1")
    e(f"s_mov_b64 exec, s[{sEX}:{sEX+1}]")
    e.label("L_noclear")
    e(f"s_mov_b32 s{M1}, s18"); e(f"s_and_b32 s{M1+1}, s19, 0xffff")
    e(f"s_cmp_eq_u32 s{sISA}, 1"); e(f"s_cselect_b32 s{M1+2}, 0, 3456"); e(f"s_mov_b32 s{M1+3}, 0x20000")
    e("v_lshrrev_b32 v7, 4, v1")
    e("v_lshlrev_b32 v232, 3, v7")
    e(f"s_lshl_b32 s{T0}, s{sCG}, 9"); e(f"s_lshl_b32 s{T1}, s{sNH}, 8"); e(f"s_add_u32 s{T0}, s{T0}, s{T1}")
    e(f"v_add_u32 v232, s{T0}, v232")
    for nt in range(8):
        e(f"buffer_load_dwordx2 v[{XB[0]+2*nt}:{XB[0]+2*nt+1}], v232, s[{M1}:{M1+3}], 0 offen offset:{nt*32}")
    e("v_and_b32 v233, 15, v1")
    e("v_lshrrev_b32 v234, 2, v233")
    e("v_sub_u32 v234, 0, v234"); e("v_and_b32 v234, 3, v234")
    e("v_xor_b32 v234, v7, v234")
    e("v_lshlrev_b32 v234, 4, v234")
    e(f"v_lshl_add_u32 v{vX}, v233, 6, v234")
    e(f"s_lshl_b32 s{T0}, s{sMH}, 12")
    e(f"v_add_u32 v{vX}, s{T0}, v{vX}")
    e("v_lshrrev_b32 v233, 2, v1"); e("v_and_b32 v233, 3, v233")
    e("v_lshl_add_u32 v233, v7, 3, v233")
    e("v_and_b32 v234, 3, v1"); e("v_lshlrev_b32 v234, 3, v234")
    e("v_lshl_add_u32 v235, v233, 6, v234")
    e(f"s_lshl_b32 s{T0}, s{sNH}, 13"); e(f"s_add_u32 s{T0}, s{T0}, 8192")
    e(f"v_add_u32 v235, s{T0}, v235")
    e("v_and_b32 v236, 1, v7"); e("v_lshlrev_b32 v236, 5, v236")
    e(f"v_add_u32 v{vE}, v235, v236")
    e("v_xor_b32 v236, 32, v236")
    e(f"v_add_u32 v{vO}, v235, v236")
    e(f"v_add_u32 v{vG0}, {3*2048}, v{vO}"); e(f"v_add_u32 v{vG1}, {3*2048+256}, v{vO}")
    e(f"s_and_b32 s{T0}, s{sISA}, s{sNH}")
    e(f"s_mov_b32 s{sGD}, 0")
    e(f"s_cmp_eq_u32 s{T0}, 1"); e("s_cbranch_scc0 L_nogate")
    e(f"v_lshlrev_b32 v{vG0}, 3, v233"); e(f"v_add_u32 v{vG0}, {GATE4}, v{vG0}"); e(f"v_add_u32 v{vG1}, 32, v{vG0}")
    e(f"s_mov_b32 s{sGD}, 1")
    e.label("L_nogate")
    e("s_waitcnt vmcnt(0)")
    for nt in range(8):
        a = ACC + nt * 16
        s0 = XB[0] + 2 * nt
        e(f"v_lshlrev_b32 v{a}, 16, v{s0}"); e(f"v_and_b32 v{a+1}, 0xffff0000, v{s0}")
        e(f"v_lshlrev_b32 v{a+2}, 16, v{s0+1}"); e(f"v_and_b32 v{a+3}, 0xffff0000, v{s0+1}")
        for mt in range(1, 4):
            for r in range(4): e(f"v_mov_b32 v{a+4*mt+r}, v{a+r}")
    e(f"s_mov_b32 s{sSLOT}, 0")
    def reads(buf):
        L = []
        for mt in range(4): L.append(f"ds_read_b128 v[{XB[buf]+4*mt}:{XB[buf]+4*mt+3}], v{vX} offset:{mt*1024}")
        for nt in range(8):
            for h in range(2):
                d = WB[buf] + 4 * nt + 2 * h
                if nt == 7: L.append(f"ds_read_b64_tr_b16 v[{d}:{d+1}], v{vG0 if h == 0 else vG1}")
                else: L.append(f"ds_read_b64_tr_b16 v[{d}:{d+1}], v{vE if nt % 2 == 0 else vO} offset:{(nt>>1)*2048 + h*256}")
        return L
    def advance():
        L = [f"s_add_u32 s{sSLOT}, s{sSLOT}, 1", f"s_cmp_eq_u32 s{sSLOT}, {NS}",
             f"s_mov_b32 s{sDELTA}, {STAGE}", f"s_cselect_b32 s{sDELTA}, {-(NS-1)*STAGE & 0xffffffff}, s{sDELTA}", f"s_cselect_b32 s{sSLOT}, 0, s{sSLOT}",
             f"s_cmp_eq_u32 s{sGD}, 1", f"s_cselect_b32 s{T7}, 256, s{sDELTA}"]
        V = [f"v_add_u32 v{vX}, s{sDELTA}, v{vX}", f"v_add_u32 v{vE}, s{sDELTA}, v{vE}", f"v_add_u32 v{vO}, s{sDELTA}, v{vO}",
             f"v_add_u32 v{vG0}, s{T7}, v{vG0}", f"v_add_u32 v{vG1}, s{T7}, v{vG1}"]
        return L, V
    e("s_barrier")
    stamp(1)
    for r in reads(0): e(r)
    e("s_waitcnt lgkmcnt(0)")
    e("s_barrier")
    e(f"s_mov_b32 s{sIT}, 10")
    e(".p2align 3")
    e.label("L_main")
    for half in range(2):
        S, V = advance()
        fill = S + V + reads(1 - half)
        for m in range(32):
            nt, mt = m // 4, m % 4
            a = ACC + (nt * 4 + mt) * 4
            e(f"v_mfma_f32_16x16x32_bf16 v[{a}:{a+3}], v[{WB[half]+4*nt}:{WB[half]+4*nt+3}], v[{XB[half]+4*mt}:{XB[half]+4*mt+3}], v[{a}:{a+3}]")
            if m == 0:
                for s_ in S: e(fill.pop(0))
            if fill: e(fill.pop(0))
        assert not fill
        e("s_waitcnt lgkmcnt(0)")
        if half == 1:
            e(f"s_sub_u32 s{sIT}, s{sIT}, 1"); e(f"s_cmp_lg_u32 s{sIT}, 0")
        e("s_barrier")
    e("s_cbranch_scc1 L_main")
    stamp(2)
    e("v_mov_b32 v233, 0")
    e(f"buffer_load_dword v232, v233, s[{DBG}:{DBG+3}], 0 offen sc1")
    e("s_nop 7")
    e(f"s_cmp_eq_u32 s{sISA}, 1"); e("s_cbranch_scc1 L_epiA")

    e(f"s_lshl_b32 s{T0}, s{sRB}, 1"); e(f"s_add_u32 s{T0}, s{T0}, s{sMH}"); e(f"s_mul_i32 s{T0}, s{T0}, 54")
    e(f"s_lshl_b32 s{T1}, s{sCG}, 3"); e(f"s_lshl_b32 s{T2}, s{sNH}, 2"); e(f"s_add_u32 s{T1}, s{T1}, s{T2}")
    e(f"s_add_u32 s{T0}, s{T0}, s{T1}"); e(f"s_lshl_b32 s{T0}, s{T0}, 12")
    if HP_OFF: e(f"s_add_u32 s{T0}, s{T0}, {HP_OFF}")
    e("v_lshlrev_b32 v234, 4, v1")
    for up in range(4):
        if up == 2:
            e(f"s_cmp_ge_u32 s{T1}, 52"); e("s_cbranch_scc1 L_epiB_done")
        for mt in range(4):
            d = 236 + 4 * ((up * 4 + mt) % 4)
            for tt in range(2):
                a = ACC + ((2 * up + tt) * 4 + mt) * 4
                for r in range(4): e(f"v_max_f32 v{a+r}, 0, v{a+r}")
                e(f"v_pk_mul_f32 v[{a}:{a+1}], v[{a}:{a+1}], v[{a}:{a+1}]")
                e(f"v_pk_mul_f32 v[{a+2}:{a+3}], v[{a+2}:{a+3}], v[{a+2}:{a+3}]")
                e(f"v_cvt_pk_bf16_f32 v{d+2*tt}, v{a}, v{a+1}")
                e(f"v_cvt_pk_bf16_f32 v{d+2*tt+1}, v{a+2}, v{a+3}")
            e(f"buffer_store_dwordx4 v[{d}:{d+3}], v234, s[{WS}:{WS+3}], s{T0} offen offset:{mt*1024} sc1")
        e(f"s_add_u32 s{T0}, s{T0}, 4096")
    e.label("L_epiB_done")
    e("s_branch L_p1_store_done")

    e.label("L_epiA")
    e("v_and_b32 v233, 15, v1"); e("v_lshrrev_b32 v7, 4, v1")
    e(f"s_lshl_b32 s{T0}, s{sMH}, 6")
    e(f"v_add_u32 v233, s{T0}, v233")
    e(f"v_mul_u32_u24 v234, {PQ}, v233")
    e("v_lshl_add_u32 v234, v7, 3, v234")
    e(f"s_lshl_b32 s{T0}, s{sODD}, 5"); e(f"v_add_u32 v235, s{T0}, v234")
    e(f"s_lshl_b32 s{T0}, s{sODD}, 7"); e(f"v_subrev_u32 v236, s{T0}, v234")
    colE = [0, 32, 64, 96, 160, 192, 224, 256, 320, 352, 384, 416, 128, 288, 448]
    e(f"s_cmp_eq_u32 s{sNH}, 1"); e("s_cbranch_scc1 L_epiA_n1")
    def qkv_write(nh):
        for nt in range(8):
            tile = 8 * nh + nt
            if tile == 15: continue
            for mt in range(4):
                a = ACC + (nt * 4 + mt) * 4
                d = 238 + 2 * ((nt * 4 + mt) % 8)
                e(f"v_cvt_pk_bf16_f32 v{d}, v{a}, v{a+1}"); e(f"v_cvt_pk_bf16_f32 v{d+1}, v{a+2}, v{a+3}")
                e(f"ds_write_b64 v{235 if tile < 12 else 236}, v[{d}:{d+1}] offset:{colE[tile] + mt*16*PQ}")
    qkv_write(0)
    e("s_branch L_epiA_w")
    e.label("L_epiA_n1")
    qkv_write(1)
    e(f"s_cmp_eq_u32 s{sCG}, 0"); e("s_cbranch_scc0 L_epiA_w")
    for mt in range(4):
        a = ACC + (7 * 4 + mt) * 4
        e(f"v_cvt_pk_bf16_f32 v238, v{a}, v{a}"); e("v_lshlrev_b32 v238, 16, v238")
        e("v_mul_f32 v238, 0xbfb8aa3b, v238")
        e("v_exp_f32 v238, v238"); e("v_add_f32 v238, 1.0, v238"); e("v_rcp_f32 v238, v238")
        e("v_cvt_pk_bf16_f32 v238, v238, v238"); e(f"v_lshlrev_b32 v{240+mt}, 16, v238")
    e("v_and_b32 v233, 15, v1")
    for mt in range(4):
        e(f"v_add_u32 v238, {16*mt}, v233")
        e("v_lshlrev_b32 v239, 1, v238"); e(f"s_add_u32 s{T0}, s{sT0}, s{sMH}"); e(f"v_add_u32 v239, s{T0}, v239")
        e("v_lshlrev_b32 v244, 2, v239")
        e(f"v_cmp_le_u32 s[{sM}:{sM+1}], 7, v238"); e(f"v_cmp_gt_u32 s[{sM+2}:{sM+3}], 16, v1"); e(f"v_cmp_gt_u32 vcc, 2048, v239")
        e(f"s_and_b64 s[{sM}:{sM+1}], s[{sM}:{sM+1}], s[{sM+2}:{sM+3}]"); e(f"s_and_b64 vcc, vcc, s[{sM}:{sM+1}]")
        e(f"v_mov_b32 v245, {BIG}"); e("s_nop 1"); e("v_cndmask_b32 v244, v245, v244, vcc")
        e(f"s_mov_b32 s{T1}, {G_OFF}")
        e(f"buffer_store_dword v{240+mt}, v244, s[{WS}:{WS+3}], s{T1} offen sc1")
    e.label("L_epiA_w")
    e("s_waitcnt lgkmcnt(0)")
    e.label("L_attn")
    e("s_barrier")
    stamp(3)
    e(f"s_and_b32 s{T0}, s{sWAVE}, 3"); e(f"s_lshr_b32 s{T1}, s{sWAVE}, 2")
    e(f"s_mul_i32 s{T2}, s{T1}, {64*PQ}"); e(f"s_mul_i32 s{T3}, s{T0}, 40"); e(f"s_add_u32 s{T2}, s{T2}, s{T3}")
    e(f"v_mul_u32_u24 v2, {PQ}, v1"); e(f"v_add_u32 v2, s{T2}, v2")
    for kb in range(3):
        e(f"v_subrev_u32 v9, {8-4*kb}, v1"); e("v_max_i32 v9, 0, v9")
        e(f"v_mul_u32_u24 v9, {PQ}, v9"); e(f"v_add_u32 v{3+kb}, s{T2}, v9")
    e("v_and_b32 v9, 48, v1"); e("v_and_b32 v10, 3, v1"); e("v_lshl_add_u32 v9, v10, 2, v9")
    e("v_bfe_u32 v10, v1, 2, 2"); e("v_add_u32 v9, v9, v10")
    for kb in range(3):
        e(f"v_subrev_u32 v10, {8-4*kb}, v9"); e("v_max_i32 v10, 0, v10")
        e(f"v_mul_u32_u24 v10, {PQ}, v10"); e(f"v_add_u32 v{6+kb}, s{T2}, v10")
    Q = 16; K = 28; V = 60; S = 92; O = 104
    for s_ in range(5): e(f"ds_read_b64 v[{Q+2*s_}:{Q+2*s_+1}], v2 offset:{8*s_}")
    for kb in range(3):
        for s_ in range(5): e(f"ds_read_b64 v[{K+10*kb+2*s_}:{K+10*kb+2*s_+1}], v{3+kb} offset:{160+8*s_}")
    for kb in range(3):
        for dg in range(5): e(f"ds_read_b64_tr_b16 v[{V+10*kb+2*dg}:{V+10*kb+2*dg+1}], v{6+kb} offset:{320+8*dg}")
    for r in range(12): e(f"v_mov_b32 v{S+r}, 0")
    for r in range(20): e(f"v_mov_b32 v{O+r}, 0")
    e("v_and_b32 v9, 3, v1")
    e(f"v_cmp_eq_u32 s[{sM}:{sM+1}], 0, v9"); e(f"v_cmp_ge_u32 s[{sM+2}:{sM+3}], 1, v9"); e(f"v_cmp_ge_u32 s[{sM+4}:{sM+5}], 2, v9")
    e("s_waitcnt lgkmcnt(15)")
    for s_ in range(5):
        for kb in range(3):
            e(f"v_mfma_f32_4x4x4_16b_bf16 v[{S+4*kb}:{S+4*kb+3}], v[{K+10*kb+2*s_}:{K+10*kb+2*s_+1}], v[{Q+2*s_}:{Q+2*s_+1}], v[{S+4*kb}:{S+4*kb+3}]")
    Y = 124
    e(f"v_cndmask_b32 v{Y}, v{S+9}, v{S+1}, s[{sM}:{sM+1}]")
    e(f"v_cndmask_b32 v{Y+1}, v{S+10}, v{S+2}, s[{sM+2}:{sM+3}]")
    e(f"v_cndmask_b32 v{Y+2}, v{S+11}, v{S+3}, s[{sM+4}:{sM+5}]")
    ys = [Y, Y+1, Y+2, S+4, S+5, S+6, S+7, S+8]
    e(f"s_cmp_eq_u32 s{sRB}, 0"); e("s_cbranch_scc0 L_nomask")
    e("v_and_b32 v9, 60, v1"); e("v_sub_u32 v9, 15, v9")
    e(f"v_mov_b32 v10, 0xf149f2ca")
    for n, reg in ((4, S+4), (5, S+5), (6, S+6), (7, S+7), (8, S+8)):
        e(f"v_cmp_lt_i32 vcc, {n}, v9"); e(f"v_cndmask_b32 v{reg}, v{reg}, v10, vcc")
    for n, reg, m in ((1, Y, sM), (2, Y+1, sM+2), (3, Y+2, sM+4)):
        e(f"v_mov_b32 v11, {n+8}"); e(f"v_cndmask_b32 v11, v11, {n}, s[{m}:{m+1}]")
        e(f"v_cmp_lt_i32 vcc, v11, v9"); e(f"v_cndmask_b32 v{reg}, v{reg}, v10, vcc")
    e.label("L_nomask")
    e(f"v_max3_f32 v9, v{ys[0]}, v{ys[1]}, v{ys[2]}"); e(f"v_max3_f32 v10, v{ys[3]}, v{ys[4]}, v{ys[5]}")
    e(f"v_max3_f32 v9, v9, v{ys[6]}, v{ys[7]}"); e("v_max_f32 v9, v9, v10")
    CS = 0.22360679774997896 * 1.4426950408889634
    import struct
    csb = struct.unpack('<I', struct.pack('<f', CS))[0]
    e(f"s_mov_b32 s{T4}, {csb}")
    e(f"v_mul_f32 v9, s{T4}, v9")
    for y in ys: e(f"v_fma_f32 v{y}, v{y}, s{T4}, -v9")
    for y in ys: e(f"v_exp_f32 v{y}, v{y}")
    e(f"v_add_f32 v9, v{ys[0]}, v{ys[1]}"); e(f"v_add_f32 v10, v{ys[2]}, v{ys[3]}")
    e(f"v_add_f32 v11, v{ys[4]}, v{ys[5]}"); e(f"v_add_f32 v12, v{ys[6]}, v{ys[7]}")
    e("v_add_f32 v9, v9, v10"); e("v_add_f32 v11, v11, v12"); e("v_add_f32 v9, v9, v11")
    e("v_rcp_f32 v9, v9")
    for y in ys: e(f"v_mul_f32 v{y}, v{y}, v9")
    P = 128
    e(f"v_cndmask_b32 v{S+1}, 0, v{Y}, s[{sM}:{sM+1}]"); e(f"v_cndmask_b32 v{S+9}, v{Y}, 0, s[{sM}:{sM+1}]")
    e(f"v_cndmask_b32 v{S+2}, 0, v{Y+1}, s[{sM+2}:{sM+3}]"); e(f"v_cndmask_b32 v{S+10}, v{Y+1}, 0, s[{sM+2}:{sM+3}]")
    e(f"v_cndmask_b32 v{S+3}, 0, v{Y+2}, s[{sM+4}:{sM+5}]"); e(f"v_cndmask_b32 v{S+11}, v{Y+2}, 0, s[{sM+4}:{sM+5}]")
    e(f"v_mov_b32 v{S}, 0")
    for kb in range(3):
        e(f"v_cvt_pk_bf16_f32 v{P+2*kb}, v{S+4*kb}, v{S+4*kb+1}"); e(f"v_cvt_pk_bf16_f32 v{P+2*kb+1}, v{S+4*kb+2}, v{S+4*kb+3}")
    e("s_waitcnt lgkmcnt(0)")
    for kb in range(3):
        for dg in range(5):
            e(f"v_mfma_f32_4x4x4_16b_bf16 v[{O+4*dg}:{O+4*dg+3}], v[{V+10*kb+2*dg}:{V+10*kb+2*dg+1}], v[{P+2*kb}:{P+2*kb+1}], v[{O+4*dg}:{O+4*dg+3}]")
    e(f"s_mul_i32 s{T2}, s{T1}, {64*PO}"); e(f"s_mul_i32 s{T3}, s{T0}, 40"); e(f"s_add_u32 s{T2}, s{T2}, s{T3}"); e(f"s_add_u32 s{T2}, s{T2}, {OB}")
    e(f"v_mul_u32_u24 v2, {PO}, v1"); e(f"v_add_u32 v2, s{T2}, v2")
    for dg in range(5):
        e(f"v_cvt_pk_bf16_f32 v{Q+2*dg}, v{O+4*dg}, v{O+4*dg+1}"); e(f"v_cvt_pk_bf16_f32 v{Q+2*dg+1}, v{O+4*dg+2}, v{O+4*dg+3}")
        e(f"ds_write_b64 v2, v[{Q+2*dg}:{Q+2*dg+1}] offset:{8*dg}")
    e("s_waitcnt lgkmcnt(0)")
    e("s_barrier")
    for r in range(3):
        if r == 2:
            e(f"s_cmp_ge_u32 s{sWAVE}, 4"); e("s_cbranch_scc1 L_ostore_done")
        e(f"s_add_u32 s{T0}, s{sWAVE}, {8*r}"); e(f"s_lshr_b32 s{T1}, s{T0}, 1"); e(f"s_and_b32 s{T0}, s{T0}, 1")
        e(f"s_lshl_b32 s{T2}, s{T0}, 6")
        e(f"v_add_u32 v2, s{T2}, v1")
        e("v_add_u32 v3, 14, v2")
        e("v_and_b32 v4, 1, v3"); e("v_lshrrev_b32 v5, 1, v3"); e("v_lshl_add_u32 v4, v4, 6, v5")
        e("v_min_u32 v4, 127, v4")
        e(f"v_mul_u32_u24 v4, {PO}, v4"); e(f"s_lshl_b32 s{T3}, s{T1}, 4"); e(f"s_add_u32 s{T3}, s{T3}, {OB}")
        e(f"v_add_u32 v4, s{T3}, v4")
        e(f"ds_read_b128 v[8:11], v4")
        e(f"s_add_u32 s{T3}, s{sT0}, 14"); e(f"v_add_u32 v5, s{T3}, v2")
        e(f"s_mul_i32 s{T4}, s{sCG}, 10"); e(f"s_add_u32 s{T4}, s{T4}, s{T1}")
        e(f"s_lshr_b32 s{T5}, s{T4}, 2"); e(f"s_and_b32 s{T4}, s{T4}, 3")
        e(f"s_lshl_b32 s{T5}, s{T5}, 12"); e(f"s_lshl_b32 s{T4}, s{T4}, 8"); e(f"s_add_u32 s{T5}, s{T5}, s{T4}"); e(f"s_add_u32 s{T5}, s{T5}, {OP_OFF}")
        e("v_lshrrev_b32 v6, 6, v5"); e(f"v_mul_u32_u24 v6, {20*4096}, v6")
        e("v_bfe_u32 v7, v5, 4, 2"); e("v_lshl_add_u32 v6, v7, 10, v6")
        e("v_and_b32 v7, 15, v5"); e("v_lshl_add_u32 v6, v7, 4, v6")
        e(f"v_cmp_gt_u32 vcc, 114, v2"); e(f"s_mov_b64 s[{sM}:{sM+1}], vcc"); e(f"v_cmp_gt_u32 vcc, 2048, v5"); e(f"s_and_b64 vcc, vcc, s[{sM}:{sM+1}]")
        e(f"v_mov_b32 v7, {BIG}"); e("s_nop 1"); e("v_cndmask_b32 v6, v7, v6, vcc")
        e("s_waitcnt lgkmcnt(0)")
        e(f"buffer_store_dwordx4 v[8:11], v6, s[{WS}:{WS+3}], s{T5} offen sc1")
    e.label("L_ostore_done")

    e.label("L_p1_store_done")
    e("s_waitcnt vmcnt(0)")
    e("s_barrier")
    stamp(4)
    e(f"s_cmp_eq_u32 s{sWAVE}, 0"); e("s_cbranch_scc0 L_flag_done")
    e(f"s_mov_b32 s{T0}, 0x40000")
    e.label("L_chk")
    e(f"v_cmp_eq_u32 vcc, 1, v232"); e("s_cbranch_vccnz L_chk_ok")
    e("v_mov_b32 v233, 0")
    e(f"buffer_load_dword v232, v233, s[{DBG}:{DBG+3}], 0 offen sc1"); e("s_waitcnt vmcnt(0)")
    e(f"s_sub_u32 s{T0}, s{T0}, 1"); e(f"s_cmp_lg_u32 s{T0}, 0"); e("s_cbranch_scc1 L_chk")
    e.label("L_chk_ok")
    e(f"s_lshl_b32 s{T0}, s{sFLAG}, 6"); e(f"s_add_u32 s{T0}, s{T0}, {FL_OFF}")
    e("v_mov_b32 v233, 0"); e("v_mov_b32 v234, 1")
    e(f"s_mov_b64 s[{sEX}:{sEX+1}], exec"); e("s_mov_b64 exec, 1")
    e(f"buffer_store_dword v234, v233, s[{WS}:{WS+3}], s{T0} offen sc1")
    e(f"s_mov_b64 exec, s[{sEX}:{sEX+1}]")
    e.label("L_flag_done")
    if o['stop'] == 'p1':
        e("s_branch L_fin")
    else:
        e("s_branch L_phase3")

    e.label("L_loader")
    vm = VM(e)
    vx0, vx1, vw0, vw1 = 2, 3, 4, 5
    e(f"s_sub_u32 s{sLW}, s{sWAVE}, 4")
    srd(e, M1, 24, 1280)
    e(f"s_mul_i32 s{T0}, s{sLW}, 160")
    e(f"v_add_u32 v20, s{T0}, v1"); e("v_add_u32 v21, 64, v20"); e("v_and_b32 v22, 31, v1"); e(f"v_add_u32 v22, s{T0}, v22"); e("v_add_u32 v22, 128, v22")
    for k in range(3): e(f"v_lshlrev_b32 v{24+k}, 1, v{20+k}")
    stamp(9)
    for k in range(3):
        e(f"buffer_load_ushort v{28+k}, v{24+k}, s[{M1}:{M1+3}], 0 offen"); vm.issue('gate')
    e(f"s_lshl_b32 s{T0}, s2, 2"); e(f"s_add_u32 s{T0}, s{T0}, s{sLW}")
    e(f"s_mul_i32 s{T1}, s{T0}, 205"); e(f"s_lshr_b32 s{T1}, s{T1}, 11")
    e(f"s_mul_i32 s{T2}, s{T1}, 10"); e(f"s_sub_u32 s{T2}, s{T0}, s{T2}")
    e(f"s_cmp_lt_u32 s{T1}, 20")
    e(f"s_cselect_b32 s{M2}, s12, s20"); e(f"s_cselect_b32 s{T3}, s13, s21")
    csel(e, M2+2, 640*1280, 1728*1280)
    e(f"s_cselect_b32 s{T4}, 0, 20")
    e(f"s_and_b32 s{M2+1}, s{T3}, 0xffff"); e(f"s_mov_b32 s{M2+3}, 0x20000")
    e(f"s_sub_u32 s{T4}, s{T1}, s{T4}"); e(f"s_mul_i32 s{T4}, s{T4}, {32*1280}")
    e("v_lshrrev_b32 v6, 3, v1"); e("v_mul_u32_u24 v6, 1280, v6"); e("v_and_b32 v7, 7, v1"); e("v_lshl_add_u32 v6, v7, 4, v6")
    e(f"s_lshl_b32 s{T5}, s{T2}, 7"); e(f"v_add_u32 v6, s{T5}, v6")
    e(f"s_cmp_lt_u32 s{T0}, 740"); e(f"s_cselect_b32 s{T6}, 0, {BIG}")
    e(f"v_or_b32 v6, s{T6}, v6")
    e(f"s_lshl_b32 s{T5}, s{sLW}, 12"); e(f"s_add_u32 s{T5}, s{T5}, {RSCR}")
    for d in range(4):
        e(f"s_add_u32 m0, s{T5}, {d*1024}")
        e(f"buffer_load_dwordx4 v6, s[{M2}:{M2+3}], s{T4} offen lds"); vm.issue('rp')
        e(f"s_add_u32 s{T4}, s{T4}, {8*1280}")
    sID, sS, sC10, sSCR, sINV = 84 + 0, 85, 90, 91, 92
    e(f"s_mov_b32 s{sID}, s{T0}"); e(f"s_mov_b32 s{sS}, s{T1}"); e(f"s_mov_b32 s{sC10}, s{T2}"); e(f"s_mov_b32 s{sSCR}, s{T5}"); e(f"s_mov_b32 s{sINV}, s{T6}")
    e("v_lshrrev_b32 v8, 2, v1")
    e("v_lshrrev_b32 v9, 4, v1"); e("v_sub_u32 v9, 0, v9"); e("v_and_b32 v9, 3, v9")
    e("v_and_b32 v10, 3, v1"); e("v_xor_b32 v9, v9, v10"); e("v_lshlrev_b32 v9, 4, v9")
    e(f"s_cmp_eq_u32 s{sISA}, 1"); e(f"s_cselect_b32 s{T0}, 1, 0")
    e(f"v_lshlrev_b32 v8, s{T0}, v8")
    for tt in range(2):
        e(f"s_lshl_b32 s{T1}, s{sLW}, 1"); e(f"s_add_u32 s{T1}, s{T1}, {tt}")
        e(f"s_and_b32 s{T2}, s{T1}, 3"); e(f"s_lshl_b32 s{T2}, s{T2}, 5"); e(f"s_lshr_b32 s{T3}, s{T1}, 2")
        e(f"s_add_u32 s{T2}, s{T2}, s{T3}"); e(f"s_add_u32 s{T2}, s{T2}, s{sT0}")
        e(f"s_lshl_b32 s{T3}, s{sRB}, 7"); e(f"s_lshl_b32 s{T4}, s{T1}, 4"); e(f"s_add_u32 s{T3}, s{T3}, s{T4}")
        e(f"s_cmp_eq_u32 s{sISA}, 1"); e(f"s_cselect_b32 s{T2}, s{T2}, s{T3}")
        e(f"v_add_u32 v10, s{T2}, v8")
        e(f"v_mul_u32_u24 v11, 1280, v10"); e("v_add_u32 v11, v11, v9")
        e(f"v_cmp_gt_u32 vcc, 2048, v10"); e(f"v_mov_b32 v12, {BIG}"); e("s_nop 0")
        e(f"v_cndmask_b32 v{vx0+tt}, v12, v11, vcc")
    e("v_lshrrev_b32 v8, 2, v1"); e(f"v_mul_lo_u32 v8, v8, s{sPITCH}")
    e("v_and_b32 v9, 1, v1"); e("v_lshl_add_u32 v8, v9, 4, v8")
    e("v_lshrrev_b32 v9, 1, v1"); e("v_lshrrev_b32 v10, 5, v1"); e("v_xor_b32 v9, v9, v10"); e("v_and_b32 v9, 1, v9")
    e("v_cmp_eq_u32 vcc, 1, v9")
    e(f"s_mov_b64 s[94:95], vcc")
    for pp in range(2):
        e(f"s_lshl_b32 s{T1}, s{sLW}, 1"); e(f"s_add_u32 s{T1}, s{T1}, {pp}")
        e(f"s_lshl_b32 s{T2}, s{sCG}, 9"); e(f"s_lshl_b32 s{T3}, s{T1}, 6"); e(f"s_add_u32 s{T2}, s{T2}, s{T3}")
        e(f"s_add_u32 s{T3}, s{T2}, 32")
        e(f"s_cmp_ge_u32 s{T2}, 3456"); e(f"s_cselect_b32 s{T2}, {BIG}, s{T2}"); e(f"s_cselect_b32 s{T3}, {BIG}, s{T3}")
        e(f"s_cmp_eq_u32 s{sISA}, 1"); lab = e.newlabel('wB'); e(f"s_cbranch_scc0 {lab}")
        e(f"s_mul_i32 s{T4}, s{sCG}, 160")
        lab6 = e.newlabel('p6'); e(f"s_cmp_lt_u32 s{T1}, 6"); e(f"s_cbranch_scc0 {lab6}")
        e(f"s_lshr_b32 s{T2}, s{T1}, 1"); e(f"s_mul_i32 s{T2}, s{T2}, 1280"); e(f"s_add_u32 s{T2}, s{T2}, s{T4}")
        e(f"s_and_b32 s{T3}, s{T1}, 1"); e(f"s_lshl_b32 s{T3}, s{T3}, 6"); e(f"s_add_u32 s{T2}, s{T2}, s{T3}")
        e(f"s_lshl_b32 s{T3}, s{sODD}, 5"); e(f"s_add_u32 s{T2}, s{T2}, s{T3}"); e(f"s_add_u32 s{T3}, s{T2}, 32")
        e(f"s_branch {lab}")
        e.label(lab6)
        e(f"s_cmp_eq_u32 s{sODD}, 1"); e(f"s_cselect_b32 s{T2}, 0, 128"); e(f"s_add_u32 s{T2}, s{T2}, s{T4}")
        e(f"s_add_u32 s{T3}, s{T2}, 1280")
        e(f"s_cmp_eq_u32 s{T1}, 7"); lab7 = e.newlabel('p7'); e(f"s_cbranch_scc0 {lab}")
        e(f"s_add_u32 s{T2}, s{T2}, 2560"); e(f"s_mov_b32 s{T3}, {BIG}")
        e.label(lab)
        e(f"v_mov_b32 v10, s{T2}"); e(f"v_mov_b32 v11, s{T3}")
        e(f"v_cndmask_b32 v10, v10, v11, s[94:95]")
        e(f"v_add_u32 v{vw0+pp}, v10, v8")
    e(f"s_lshl_b32 s{sLX}, s{sLW}, 11"); e(f"s_lshl_b32 s{sLWb}, s{sLW}, 12"); e(f"s_add_u32 s{sLWb}, s{sLWb}, 8192")
    e(f"s_mov_b32 s{sKX}, 0"); e(f"s_mov_b32 s{sKW0}, 0"); e(f"s_lshl_b32 s{sKW1}, s{sPITCH}, 4")
    e(f"s_lshl_b32 s{T7}, s{sPITCH}, 5")
    def stage(j):
        slot = (j % NS) * STAGE
        for tt in range(2):
            e(f"s_add_u32 m0, s{sLX}, {slot + tt*1024}")
            e(f"buffer_load_dwordx4 v{vx0+tt}, s[{X}:{X+3}], s{sKX} offen lds"); vm.issue(f'st{j}')
        for pp in range(2):
            for hf in range(2):
                e(f"s_add_u32 m0, s{sLWb}, {slot + pp*2048 + hf*1024}")
                e(f"buffer_load_dwordx4 v{vw0+pp}, s[{W}:{W+3}], s{sKW1 if hf else sKW0} offen lds"); vm.issue(f'st{j}')
        e(f"s_add_u32 s{sKX}, s{sKX}, 64"); e(f"s_add_u32 s{sKW0}, s{sKW0}, s{T7}"); e(f"s_add_u32 s{sKW1}, s{sKW1}, s{T7}")
    stamp(10)
    for j in range(NS):
        stage(j)
        if j == 0: stamp(11)
    stamp(1)
    vm.wait('gate')
    stamp(12)
    for k in range(3):
        e(f"v_lshl_or_b32 v32, v{28+k}, 16, v{28+k}"); e("v_mov_b32 v33, v32")
        e(f"v_lshlrev_b32 v34, 3, v{20+k}"); e(f"v_add_u32 v34, {GATE4}, v34"); e(f"ds_write_b64 v34, v[32:33]")
    e("v_lshrrev_b32 v7, 4, v1"); e("v_bfe_u32 v8, v1, 2, 2"); e("v_and_b32 v9, 3, v1")
    e(f"s_cmp_lt_u32 s{sS}, 20"); e(f"s_cselect_b32 s{T0}, 3, 2"); csel(e, T1, 512, 2048)
    e(f"v_lshlrev_b32 v10, s{T0}, v7"); e("v_add_u32 v10, v10, v8")
    e("v_lshlrev_b32 v10, 7, v10"); e("v_lshl_add_u32 v10, v9, 3, v10"); e(f"v_add_u32 v10, s{sSCR}, v10")
    e(f"v_add_u32 v11, s{T1}, v10")
    vm.wait('rp')
    stamp(13)
    for tt in range(4):
        e(f"ds_read_b64_tr_b16 v[{40+4*tt}:{41+4*tt}], v10 offset:{32*tt}")
        e(f"ds_read_b64_tr_b16 v[{42+4*tt}:{43+4*tt}], v11 offset:{32*tt}")
    e("v_lshlrev_b32 v12, 4, v1"); e(f"v_or_b32 v12, s{sINV}, v12")
    e("s_waitcnt lgkmcnt(0)")
    for tt in range(4):
        e(f"s_lshl_b32 s{T0}, s{sC10}, 2"); e(f"s_add_u32 s{T0}, s{T0}, {tt}")
        e(f"s_mul_i32 s{T1}, s{T0}, 52"); e(f"s_lshr_b32 s{T1}, s{T1}, 8")
        e(f"s_mul_i32 s{T2}, s{T1}, 5"); e(f"s_sub_u32 s{T2}, s{T0}, s{T2}")
        e(f"s_mul_i32 s{T1}, s{T1}, 74"); e(f"s_add_u32 s{T1}, s{T1}, s{sS}"); e(f"s_mul_i32 s{T1}, s{T1}, 5")
        e(f"s_add_u32 s{T1}, s{T1}, s{T2}"); e(f"s_lshl_b32 s{T1}, s{T1}, 10"); e(f"s_add_u32 s{T1}, s{T1}, {WP_OFF}")
        e(f"s_and_b32 s{T1}, s{T1}, 0x00ffffff")
        e(f"buffer_store_dwordx4 v[{40+4*tt}:{43+4*tt}], v12, s[{WS}:{WS+3}], s{T1} offen sc1"); vm.issue('rps')
    vm.wait('st0')
    stamp(14)
    e("s_barrier")
    vm.wait('st1')
    e("s_barrier")
    for j in range(20):
        if j + NS < 20: stage(j + NS)
        if j == 4:
            e(f"s_lshl_b32 s{T0}, s2, 0"); e(f"s_and_b32 s{T0}, s{T0}, 31"); e(f"s_lshl_b32 s{T0}, s{T0}, 2"); e(f"s_add_u32 s{T0}, s{T0}, 128")
            e(f"v_mov_b32 v13, s{T0}"); e("v_mov_b32 v14, 1")
            e(f"s_cmp_lt_u32 s2, 185"); e(f"s_cselect_b32 s{T1}, 0, {BIG}"); e(f"s_cmp_eq_u32 s{sLW}, 0"); e(f"s_cselect_b32 s{T1}, s{T1}, {BIG}")
            e(f"v_or_b32 v13, s{T1}, v13"); e(f"v_mov_b32 v15, {BIG}"); e("v_cmp_eq_u32 vcc, 0, v1"); e("s_nop 1")
            e("v_cndmask_b32 v13, v15, v13, vcc")
            e(f"buffer_atomic_add v14, v13, s[{DBG}:{DBG+3}], 0 offen"); vm.issue('atom')
        if j + 2 < 20:
            vm.wait(f'st{j+2}')
            if j == 3: assert 'rps' not in vm.q
        e("s_barrier")
    stamp(2)
    e(f"s_cmp_eq_u32 s{sISA}, 1"); e("s_cbranch_scc1 L_attn")
    e("s_branch L_p1_store_done")

    e.label("L_phase3")
    A3 = 8; FB = 88; ND = 4
    e(f"s_cmp_ge_u32 s{sWAVE}, 4"); e(f"s_cselect_b32 s{T0}, 6, -2")
    e(f"s_sub_u32 s{T0}, s{sWAVE}, s{T0}")
    e(f"s_add_u32 s{T1}, s{sWAVE}, -4"); e(f"s_cmp_lt_u32 s{T1}, 2"); e("s_cbranch_scc1 L_p3_roleA")
    e(f"s_mul_i32 s{T2}, s{T0}, 9")
    e(f"s_mul_i32 s{sACT}, s{sI3}, 54"); e(f"s_add_u32 s{sACT}, s{sACT}, s{T2}"); e(f"s_lshl_b32 s{sACT}, s{sACT}, 12")
    if HP_OFF: e(f"s_add_u32 s{sACT}, s{sACT}, {HP_OFF}")
    e(f"s_add_u32 s{T3}, s{T2}, 20")
    e(f"s_mov_b32 s{T6}, {BIG}")
    e(f"s_lshr_b32 s{T4}, s{sI3}, 1"); e(f"s_mul_i32 s{T4}, s{T4}, 7"); e(f"s_add_u32 s{T4}, s{T4}, 144")
    e(f"s_lshr_b32 s{T5}, s{T2}, 3"); e(f"s_add_u32 s{T5}, s{T5}, s{T4}")
    e(f"s_add_u32 s{T2}, s{T2}, 8"); e(f"s_lshr_b32 s{T2}, s{T2}, 3"); e(f"s_add_u32 s{T2}, s{T2}, s{T4}")
    e(f"v_mov_b32 v2, s{T5}"); e(f"v_mov_b32 v3, s{T2}"); e("v_cmp_gt_u32 vcc, 4, v1"); e("s_nop 1"); e("v_cndmask_b32 v2, v3, v2, vcc")
    e("s_branch L_p3_role_done")
    e.label("L_p3_roleA")
    e(f"s_mul_i32 s{T3}, s{T1}, 10")
    e(f"s_mul_i32 s{sACT}, s{sI3}, 20"); e(f"s_add_u32 s{sACT}, s{sACT}, s{T3}"); e(f"s_lshl_b32 s{sACT}, s{sACT}, 12"); e(f"s_add_u32 s{sACT}, s{sACT}, {OP_OFF}")
    e(f"s_mov_b32 s{T6}, 0")
    e(f"s_lshl_b32 s{T4}, s{sI3}, 6"); e(f"s_mul_i32 s{T5}, s{T4}, 575"); e(f"s_lshr_b32 s{T5}, s{T5}, 16")
    e(f"s_add_u32 s{T4}, s{T4}, 63"); e(f"s_mul_i32 s{T4}, s{T4}, 575"); e(f"s_lshr_b32 s{T4}, s{T4}, 16")
    e(f"s_lshl_b32 s{T5}, s{T5}, 3"); e(f"s_lshl_b32 s{T4}, s{T4}, 3"); e(f"s_lshl_b32 s{T1}, s{T1}, 2")
    e(f"s_add_u32 s{T5}, s{T5}, s{T1}"); e(f"s_add_u32 s{T4}, s{T4}, s{T1}")
    e(f"v_mov_b32 v2, s{T5}"); e(f"v_mov_b32 v3, s{T4}"); e("v_cmp_gt_u32 vcc, 4, v1"); e("s_nop 1"); e("v_cndmask_b32 v2, v3, v2, vcc")
    e("v_and_b32 v3, 3, v1"); e("v_add_u32 v2, v2, v3")
    e.label("L_p3_role_done")
    e(f"s_mul_i32 s{sWP}, s{sJ3}, 74"); e(f"s_add_u32 s{sWP}, s{sWP}, s{T3}"); e(f"s_mul_i32 s{sWP}, s{sWP}, 5120"); e(f"s_add_u32 s{sWP}, s{sWP}, {WP_OFF}")
    e(f"s_add_u32 s{sWP4}, s{sWP}, 4096")
    e("v_lshlrev_b32 v4, 4, v1"); e(f"v_or_b32 v5, s{T6}, v4")
    e("v_lshlrev_b32 v2, 6, v2"); e(f"v_mov_b32 v3, {BIG}"); e("v_cmp_gt_u32 vcc, 8, v1"); e("s_nop 1"); e("v_cndmask_b32 v2, v3, v2, vcc")
    e("v_lshlrev_b32 v6, 2, v1"); e("v_add_u32 v6, 128, v6"); e("v_cmp_gt_u32 vcc, 32, v1"); e("s_nop 1"); e("v_cndmask_b32 v6, v3, v6, vcc")
    e("v_mov_b32 v7, 5"); e("v_cmp_gt_u32 vcc, 25, v1"); e("s_nop 1"); e("v_cndmask_b32 v7, v7, 6, vcc")
    e("v_cmp_gt_u32 vcc, 32, v1"); e("s_nop 1"); e("v_cndmask_b32 v7, 0, v7, vcc")
    e(f"s_mov_b32 s{T0}, 0x40000"); e(f"s_mov_b32 s{T1}, {FL_OFF}")
    e.label("L_poll_rp")
    e(f"buffer_load_dword v88, v6, s[{DBG}:{DBG+3}], 0 offen sc1"); e("s_waitcnt vmcnt(0)")
    e("v_cmp_lt_u32 vcc, v88, v7"); e("s_cbranch_vccz L_poll_rp_ok")
    e(f"s_sub_u32 s{T0}, s{T0}, 1"); e(f"s_cmp_lg_u32 s{T0}, 0"); e("s_cbranch_scc1 L_poll_rp")
    e.label("L_poll_rp_ok")
    e("v_mov_b32 v7, 0"); e("v_cmp_gt_u32 vcc, 8, v1"); e("s_nop 1"); e("v_cndmask_b32 v7, 0, 1, vcc")
    e.label("L_poll")
    e(f"buffer_load_dword v88, v2, s[{WS}:{WS+3}], s{T1} offen sc1"); e("s_waitcnt vmcnt(0)")
    e("v_cmp_ne_u32 vcc, v88, v7"); e("s_cbranch_vccz L_poll_ok")
    e(f"s_sub_u32 s{T0}, s{T0}, 1"); e(f"s_cmp_lg_u32 s{T0}, 0"); e("s_cbranch_scc1 L_poll")
    e.label("L_poll_ok")
    stamp(5)
    for r in range(80): e(f"v_mov_b32 v{A3+r}, 0")
    vm3 = VM(e)
    def loads3(s_):
        b = FB + 36 * (s_ % ND)
        vo = 5 if s_ == 9 else 4
        for mt in range(4):
            e(f"buffer_load_dwordx4 v[{b+4*mt}:{b+4*mt+3}], v{vo}, s[{WS}:{WS+3}], s{sACT} offen offset:{mt*1024} sc1"); vm3.issue(f's{s_}')
        for t in range(5):
            if t < 4: e(f"buffer_load_dwordx4 v[{b+16+4*t}:{b+16+4*t+3}], v{vo}, s[{WS}:{WS+3}], s{sWP} offen offset:{t*1024} sc1")
            else: e(f"buffer_load_dwordx4 v[{b+16+4*t}:{b+16+4*t+3}], v{vo}, s[{WS}:{WS+3}], s{sWP4} offen sc1")
            vm3.issue(f's{s_}')
        e(f"s_add_u32 s{sACT}, s{sACT}, 4096"); e(f"s_add_u32 s{sWP}, s{sWP}, 5120"); e(f"s_add_u32 s{sWP4}, s{sWP4}, 5120")
    for s_ in range(ND - 1): loads3(s_)
    for s_ in range(10):
        if s_ + ND - 1 < 10: loads3(s_ + ND - 1)
        vm3.wait(f's{s_}')
        b = FB + 36 * (s_ % ND)
        for t in range(5):
            for mt in range(4):
                a = A3 + (t * 4 + mt) * 4
                e(f"v_mfma_f32_16x16x32_bf16 v[{a}:{a+3}], v[{b+16+4*t}:{b+16+4*t+3}], v[{b+4*mt}:{b+4*mt+3}], v[{a}:{a+3}]")
    stamp(6)
    e(f"s_mul_i32 s{T0}, s{sWAVE}, 20480"); e(f"v_add_u32 v2, s{T0}, v4")
    e("s_nop 4")
    for tau in range(20): e(f"ds_write_b128 v2, v[{A3+4*tau}:{A3+4*tau+3}] offset:{tau*1024}")
    e("s_waitcnt lgkmcnt(0)")
    e("s_barrier")
    srd(e, M1, 26, 2048 * 1280)
    srd(e, M2, 22, 1280)
    for r in range(3):
        if r == 2:
            e(f"s_cmp_ge_u32 s{sWAVE}, 4"); e("s_cbranch_scc1 L_fin")
        e(f"s_add_u32 s{T0}, s{sWAVE}, {8*r}"); e(f"s_lshr_b32 s{T1}, s{T0}, 2"); e(f"s_and_b32 s{T2}, s{T0}, 3")
        e(f"s_lshl_b32 s{T3}, s{T0}, 10"); e(f"v_add_u32 v2, s{T3}, v4")
        for w in range(8):
            off = w * 20480
            if off < 65536: e(f"ds_read_b128 v[{8+4*w}:{11+4*w}], v2 offset:{off}")
            else:
                if w == 4: e("v_add_u32 v3, 0x14000, v2")
                e(f"ds_read_b128 v[{8+4*w}:{11+4*w}], v3 offset:{off - 0x14000}")
        e("v_and_b32 v40, 15, v1"); e(f"s_lshl_b32 s{T4}, s{sI3}, 6"); e(f"s_lshl_b32 s{T5}, s{T2}, 4"); e(f"s_add_u32 s{T4}, s{T4}, s{T5}")
        e(f"v_add_u32 v40, s{T4}, v40")
        e("v_lshlrev_b32 v41, 2, v40"); e(f"s_mov_b32 s{T5}, {G_OFF}")
        e(f"buffer_load_dword v42, v41, s[{WS}:{WS+3}], s{T5} offen sc1")
        e("v_lshrrev_b32 v43, 4, v1"); e(f"s_mul_i32 s{T4}, s{sJ3}, 160"); e(f"s_lshl_b32 s{T5}, s{T1}, 5"); e(f"s_add_u32 s{T4}, s{T4}, s{T5}")
        e("v_lshlrev_b32 v43, 3, v43"); e(f"v_add_u32 v43, s{T4}, v43")
        e(f"buffer_load_dwordx2 v[44:45], v43, s[{M2}:{M2+3}], 0 offen")
        e("v_mul_u32_u24 v46, 1280, v40"); e("v_add_u32 v46, v46, v43")
        e("s_waitcnt lgkmcnt(0)")
        for q in range(4):
            e(f"v_add_f32 v{48+q}, v{8+16+q}, v{8+20+q}")
            e(f"v_add_f32 v{8+q}, v{8+q}, v{8+4+q}"); e(f"v_add_f32 v{8+8+q}, v{8+8+q}, v{8+12+q}")
            e(f"v_add_f32 v{8+24+q}, v{8+24+q}, v{8+28+q}")
            e(f"v_add_f32 v{8+q}, v{8+q}, v{8+8+q}"); e(f"v_add_f32 v{8+q}, v{8+q}, v{8+24+q}")
        e("s_waitcnt vmcnt(0)")
        e("v_lshlrev_b32 v52, 16, v44"); e("v_and_b32 v53, 0xffff0000, v44"); e("v_lshlrev_b32 v54, 16, v45"); e("v_and_b32 v55, 0xffff0000, v45")
        e("v_sub_f32 v56, 1.0, v42")
        for q in range(4):
            e(f"v_add_f32 v{8+q}, v{8+q}, v{52+q}"); e(f"v_mul_f32 v{8+q}, v{8+q}, v56"); e(f"v_fma_f32 v{8+q}, v{48+q}, v42, v{8+q}")
        e("v_cvt_pk_bf16_f32 v58, v8, v9"); e("v_cvt_pk_bf16_f32 v59, v10, v11")
        e(f"buffer_store_dwordx2 v[58:59], v46, s[{M1}:{M1+3}], 0 offen")
    e.label("L_fin")
    if o['ts']:
        stamp(7)
        e(f"s_lshl_b32 s{T0}, s2, 3"); e(f"s_add_u32 s{T0}, s{T0}, s{sWAVE}"); e(f"s_lshl_b32 s{T0}, s{T0}, 6"); e(f"s_add_u32 s{T0}, s{T0}, {TS_OFF}")
        e("v_and_b32 v1, 63, v0")
        e("v_lshlrev_b32 v2, 2, v1"); e("s_mov_b64 exec, 0xffff")
        e(f"buffer_store_dword v255, v2, s[{WS}:{WS+3}], s{T0} offen")
    if o['span']:
        stamp(7)
        e("v_and_b32 v1, 63, v0")
        e("v_readlane_b32 s56, v255, 8"); e("s_nop 3"); e("v_writelane_b32 v255, s56, 9")
        e("s_not_b32 s56, s56"); e("v_writelane_b32 v255, s56, 8")
        e("v_lshlrev_b32 v2, 2, v1"); e("v_add_u32 v2, 8, v2"); e("s_mov_b64 exec, 0x3ff")
        e(f"buffer_atomic_umax v255, v2, s[{DBG}:{DBG+3}], 0 offen")
    e.label("L_end")
    body, nh = e.text()
    hdr = open('gated_mix__sliding_local_dilated__dense_activation_squared_relu__prompt.s.ref').read().split('\n')
    comments = [l for l in hdr if l.startswith(';') and '@launch' not in l and 'Override launch' not in l and 'grid=ceil' not in l]
    return "\n".join(comments) + f"""
; @launch grid=(256,1,1) block=(512,1,1) lds={LDS_BYTES}
.amdgcn_target "amdgcn-amd-amdhsa--gfx950"
.text
.globl {KNAME}
.p2align 8
.type {KNAME},@function
{KNAME}:
{body}
    s_endpgm
.section .rodata,"a"
.p2align 6
.amdhsa_kernel {KNAME}
  .amdhsa_next_free_vgpr 256
  .amdhsa_next_free_sgpr 102
  .amdhsa_accum_offset 256
  .amdhsa_group_segment_fixed_size 0
  .amdhsa_kernarg_size 96
  .amdhsa_user_sgpr_count 2
  .amdhsa_user_sgpr_kernarg_segment_ptr 1
  .amdhsa_system_sgpr_workgroup_id_x 1
.end_amdhsa_kernel
"""

if __name__ == "__main__":
    import argparse
    ap = argparse.ArgumentParser()
    ap.add_argument('-o', default='k.s'); ap.add_argument('--stop', default=None); ap.add_argument('--ts', action='store_true'); ap.add_argument('--span', action='store_true')
    a = ap.parse_args()
    open(a.o, 'w').write(gen(dict(stop=a.stop, ts=a.ts, span=a.span)))
```

```python
import sys
from emit import Emitter

KNAME = "gated_mix__sliding_local_dilated__dense_activation_squared_relu__prompt_kernel"

HP_OFF = 0x0
OP_OFF = 0x700000
WP_OFF = 0xA00000
G_OFF = 0xD00000
FL_OFF = 0xD10000
TS_OFF = 0xD20000
WS_SIZE = 0xE00000

NS = 5
STAGE = 24576
GATE4 = NS * STAGE
RSCR = GATE4 + 5632
PQ = 488
OB = 128 * PQ
PO = 176
LDS_BYTES = 163840

BIG = 0x80000000

sP = 2
sWAVE, sISA, sRB, sCG = 32, 33, 34, 35
X, W, WS, M1, M2 = 36, 40, 44, 48, 52
T0, T1, T2, T3, T4, T5, T6, T7 = 56, 57, 58, 59, 60, 61, 62, 63
sLW = 64
sKX, sKW0, sKW1, sLX, sLWb = 65, 66, 67, 68, 69
sSLOT, sDELTA, sGD, sIT = 70, 71, 72, 73
sMH, sNH = 74, 75
sT0 = 76
sPITCH = 77
sI3, sJ3 = 78, 79
sACT, sWP, sWP4 = 80, 81, 82
sODD = 83
sFLAG = 84
sTS = 86
sEX = 88
sM = 90
DBG = 96

def srd(e, base, ptr, nbytes):
    e(f"s_mov_b32 s{base}, s{ptr}")
    e(f"s_and_b32 s{base+1}, s{ptr+1}, 0xffff")
    if isinstance(nbytes, int): e(f"s_mov_b32 s{base+2}, {nbytes}")
    else: e(f"s_mov_b32 s{base+2}, {nbytes}")
    e(f"s_mov_b32 s{base+3}, 0x20000")

def csel(e, dst, a, b):
    e(f"s_mov_b32 s{dst}, {b}")
    e(f"s_cselect_b32 s{dst}, {a}, s{dst}")

class VM:
    def __init__(self, e): self.e = e; self.q = []
    def issue(self, tag): self.q.append(tag)
    def wait(self, tag):
        idx = max(i for i, t in enumerate(self.q) if t == tag)
        n = len(self.q) - 1 - idx
        assert n < 64, n
        self.e(f"s_waitcnt vmcnt({n})")
        self.q = self.q[idx + 1:]
    def waitall(self):
        self.e("s_waitcnt vmcnt(0)"); self.q = []

def gen(opts=None):
    o = dict(stop=None, ts=False, span=False, span_a=8*9+0, span_b=8*14+0)
    if opts: o.update(opts)
    e = Emitter()
    nstamp = [0]
    def stamp(idx):
        if o['span'] and idx in (8, 0, 1, 2, 4, 5, 6, 7, 3):
            e(f"s_memrealtime s[{sTS}:{sTS+1}]"); e("s_waitcnt lgkmcnt(0)")
            e(f"v_writelane_b32 v255, s{sTS}, {idx}")
            return
        if not o['ts']: return
        e(f"s_memrealtime s[{sTS}:{sTS+1}]")
        e("s_waitcnt lgkmcnt(0)")
        e(f"v_writelane_b32 v255, s{sTS}, {idx}")

    e(f"s_cmp_ge_u32 s2, 256")
    e("s_cbranch_scc1 L_end")
    if o['ts'] or o['span']:
        e("v_mov_b32 v255, 0"); stamp(8)
    e("s_load_dwordx16 s[8:23], s[0:1], 0")
    e("s_load_dwordx8 s[24:31], s[0:1], 64")
    e("v_and_b32 v1, 63, v0")
    e("v_lshrrev_b32 v2, 6, v0")
    e("s_nop 0")
    e(f"v_readfirstlane_b32 s{sWAVE}, v2")
    e(f"s_and_b32 s{T0}, s2, 7")
    e(f"s_lshr_b32 s{T1}, s2, 3")
    e(f"s_cmp_lt_u32 s{T0}, 4"); e("s_cbranch_scc1 L_role_a4")
    e(f"s_cmp_eq_u32 s{T0}, 4"); e("s_cbranch_scc1 L_role_x4")
    e(f"s_cmp_eq_u32 s{T0}, 7"); e("s_cbranch_scc1 L_role_x7")
    e(f"s_mov_b32 s{sISA}, 0")
    e(f"s_sub_u32 s{T2}, s{T0}, 5"); e(f"s_lshl_b32 s{T2}, s{T2}, 3")
    e(f"s_lshr_b32 s{sRB}, s{T1}, 2"); e(f"s_add_u32 s{sRB}, s{sRB}, s{T2}")
    e(f"s_and_b32 s{sCG}, s{T1}, 3")
    e("s_branch L_role_done")
    e.label("L_role_x7")
    e(f"s_mov_b32 s{sISA}, 0")
    e(f"s_mul_i32 s{sRB}, s{T1}, 43"); e(f"s_lshr_b32 s{sRB}, s{sRB}, 7")
    e(f"s_mul_i32 s{T2}, s{sRB}, 3"); e(f"s_sub_u32 s{sCG}, s{T1}, s{T2}"); e(f"s_add_u32 s{sCG}, s{sCG}, 4")
    e("s_branch L_role_done")
    e.label("L_role_x4")
    e(f"s_cmp_lt_u32 s{T1}, 16"); e("s_cbranch_scc0 L_role_x4b")
    e(f"s_mov_b32 s{sISA}, 1")
    e(f"s_lshr_b32 s{sRB}, s{T1}, 3"); e(f"s_add_u32 s{sRB}, s{sRB}, 16")
    e(f"s_and_b32 s{sCG}, s{T1}, 7")
    e("s_branch L_role_done")
    e.label("L_role_x4b")
    e(f"s_mov_b32 s{sISA}, 0")
    e(f"s_sub_u32 s{T1}, s{T1}, 16")
    e(f"s_mul_i32 s{sRB}, s{T1}, 43"); e(f"s_lshr_b32 s{sRB}, s{sRB}, 7")
    e(f"s_mul_i32 s{T2}, s{sRB}, 3"); e(f"s_sub_u32 s{sCG}, s{T1}, s{T2}"); e(f"s_add_u32 s{sCG}, s{sCG}, 4")
    e(f"s_add_u32 s{sRB}, s{sRB}, 11")
    e(f"s_cmp_eq_u32 s{T1}, 15")
    e(f"s_cselect_b32 s{sRB}, 10, s{sRB}")
    e(f"s_cselect_b32 s{sCG}, 6, s{sCG}")
    e("s_branch L_role_done")
    e.label("L_role_a4")
    e(f"s_mov_b32 s{sISA}, 1")
    e(f"s_lshr_b32 s{T2}, s{T0}, 1"); e(f"s_lshl_b32 s{T2}, s{T2}, 3")
    e(f"s_lshr_b32 s{sRB}, s{T1}, 2"); e(f"s_add_u32 s{sRB}, s{sRB}, s{T2}")
    e(f"s_and_b32 s{T2}, s{T0}, 1"); e(f"s_lshl_b32 s{T2}, s{T2}, 2")
    e(f"s_and_b32 s{sCG}, s{T1}, 3"); e(f"s_add_u32 s{sCG}, s{sCG}, s{T2}")
    e.label("L_role_done")
    e(f"s_and_b32 s{T0}, s2, 7"); e(f"s_lshr_b32 s{T1}, s2, 3")
    e(f"s_lshl_b32 s{sI3}, s{T0}, 2"); e(f"s_lshr_b32 s{T2}, s{T1}, 3"); e(f"s_add_u32 s{sI3}, s{sI3}, s{T2}")
    e(f"s_and_b32 s{sJ3}, s{T1}, 7")
    e(f"s_and_b32 s{sODD}, s{sCG}, 1")
    e(f"s_mul_i32 s{sT0}, s{sRB}, 114"); e(f"s_sub_u32 s{sT0}, s{sT0}, 14")
    e(f"s_cmp_eq_u32 s{sISA}, 1")
    csel(e, sPITCH, 3840, 3456)
    e(f"s_lshl_b32 s{T2}, s{sRB}, 3"); e(f"s_add_u32 s{T2}, s{T2}, s{sCG}")
    e(f"s_mul_i32 s{T3}, s{sRB}, 7"); e(f"s_add_u32 s{T3}, s{T3}, s{sCG}"); e(f"s_add_u32 s{T3}, s{T3}, 144")
    e(f"s_cmp_eq_u32 s{sISA}, 1")
    e(f"s_cselect_b32 s{sFLAG}, s{T2}, s{T3}")
    e("s_waitcnt lgkmcnt(0)")
    stamp(0)
    srd(e, X, 8, 2048*1280)
    e(f"s_cmp_eq_u32 s{sISA}, 1")
    e(f"s_cselect_b32 s{W}, s10, s16"); e(f"s_cselect_b32 s{T0}, s11, s17")
    csel(e, W+2, 640*3840, 640*3456)
    e(f"s_and_b32 s{W+1}, s{T0}, 0xffff"); e(f"s_mov_b32 s{W+3}, 0x20000")
    srd(e, WS, 30, WS_SIZE)
    srd(e, DBG, 28, 256)
    e(f"s_cmp_ge_u32 s{sWAVE}, 4")
    e("s_cbranch_scc1 L_loader")

    vX, vE, vO, vG0, vG1 = 2, 3, 4, 5, 6
    ACC = 8
    XB = [136, 152]; WB = [168, 200]
    e(f"s_lshr_b32 s{sMH}, s{sWAVE}, 1"); e(f"s_and_b32 s{sNH}, s{sWAVE}, 1")
    e(f"s_cmp_eq_u32 s2, 0"); e("s_cbranch_scc0 L_noclear")
    e(f"s_cmp_eq_u32 s{sWAVE}, 0"); e("s_cbranch_scc0 L_noclear")
    e("v_lshlrev_b32 v8, 6, v1"); e("v_mov_b32 v9, 0")
    for k in range(4):
        e(f"s_mov_b32 s{T0}, {FL_OFF + k*4096}")
        e(f"buffer_store_dword v9, v8, s[{WS}:{WS+3}], s{T0} offen sc1")
    e("s_waitcnt vmcnt(0)")
    e("v_mov_b32 v9, 1"); e("v_mov_b32 v8, 0")
    e(f"s_mov_b64 s[{sEX}:{sEX+1}], exec"); e("s_mov_b64 exec, 1")
    e(f"buffer_store_dword v9, v8, s[{DBG}:{DBG+3}], 0 offen sc1")
    e(f"s_mov_b64 exec, s[{sEX}:{sEX+1}]")
    e.label("L_noclear")
    e(f"s_mov_b32 s{M1}, s18"); e(f"s_and_b32 s{M1+1}, s19, 0xffff")
    e(f"s_cmp_eq_u32 s{sISA}, 1"); e(f"s_cselect_b32 s{M1+2}, 0, 3456"); e(f"s_mov_b32 s{M1+3}, 0x20000")
    e("v_lshrrev_b32 v7, 4, v1")
    e("v_lshlrev_b32 v232, 3, v7")
    e(f"s_lshl_b32 s{T0}, s{sCG}, 9"); e(f"s_lshl_b32 s{T1}, s{sNH}, 8"); e(f"s_add_u32 s{T0}, s{T0}, s{T1}")
    e(f"v_add_u32 v232, s{T0}, v232")
    for nt in range(8):
        e(f"buffer_load_dwordx2 v[{XB[0]+2*nt}:{XB[0]+2*nt+1}], v232, s[{M1}:{M1+3}], 0 offen offset:{nt*32}")
    e("v_and_b32 v233, 15, v1")
    e("v_lshrrev_b32 v234, 2, v233")
    e("v_sub_u32 v234, 0, v234"); e("v_and_b32 v234, 3, v234")
    e("v_xor_b32 v234, v7, v234")
    e("v_lshlrev_b32 v234, 4, v234")
    e(f"v_lshl_add_u32 v{vX}, v233, 6, v234")
    e(f"s_lshl_b32 s{T0}, s{sMH}, 12")
    e(f"v_add_u32 v{vX}, s{T0}, v{vX}")
    e("v_lshrrev_b32 v233, 2, v1"); e("v_and_b32 v233, 3, v233")
    e("v_lshl_add_u32 v233, v7, 3, v233")
    e("v_and_b32 v234, 3, v1"); e("v_lshlrev_b32 v234, 3, v234")
    e("v_lshl_add_u32 v235, v233, 6, v234")
    e(f"s_lshl_b32 s{T0}, s{sNH}, 13"); e(f"s_add_u32 s{T0}, s{T0}, 8192")
    e(f"v_add_u32 v235, s{T0}, v235")
    e("v_and_b32 v236, 1, v7"); e("v_lshlrev_b32 v236, 5, v236")
    e(f"v_add_u32 v{vE}, v235, v236")
    e("v_xor_b32 v236, 32, v236")
    e(f"v_add_u32 v{vO}, v235, v236")
    e(f"v_add_u32 v{vG0}, {3*2048}, v{vO}"); e(f"v_add_u32 v{vG1}, {3*2048+256}, v{vO}")
    e(f"s_and_b32 s{T0}, s{sISA}, s{sNH}")
    e(f"s_mov_b32 s{sGD}, 0")
    e(f"s_cmp_eq_u32 s{T0}, 1"); e("s_cbranch_scc0 L_nogate")
    e(f"v_lshlrev_b32 v{vG0}, 3, v233"); e(f"v_add_u32 v{vG0}, {GATE4}, v{vG0}"); e(f"v_add_u32 v{vG1}, 32, v{vG0}")
    e(f"s_mov_b32 s{sGD}, 1")
    e.label("L_nogate")
    e("s_waitcnt vmcnt(0)")
    for nt in range(8):
        a = ACC + nt * 16
        s0 = XB[0] + 2 * nt
        e(f"v_lshlrev_b32 v{a}, 16, v{s0}"); e(f"v_and_b32 v{a+1}, 0xffff0000, v{s0}")
        e(f"v_lshlrev_b32 v{a+2}, 16, v{s0+1}"); e(f"v_and_b32 v{a+3}, 0xffff0000, v{s0+1}")
        for mt in range(1, 4):
            for r in range(4): e(f"v_mov_b32 v{a+4*mt+r}, v{a+r}")
    e(f"s_mov_b32 s{sSLOT}, 0")
    def reads(buf):
        L = []
        for mt in range(4): L.append(f"ds_read_b128 v[{XB[buf]+4*mt}:{XB[buf]+4*mt+3}], v{vX} offset:{mt*1024}")
        for nt in range(8):
            for h in range(2):
                d = WB[buf] + 4 * nt + 2 * h
                if nt == 7: L.append(f"ds_read_b64_tr_b16 v[{d}:{d+1}], v{vG0 if h == 0 else vG1}")
                else: L.append(f"ds_read_b64_tr_b16 v[{d}:{d+1}], v{vE if nt % 2 == 0 else vO} offset:{(nt>>1)*2048 + h*256}")
        return L
    def advance():
        L = [f"s_add_u32 s{sSLOT}, s{sSLOT}, 1", f"s_cmp_eq_u32 s{sSLOT}, {NS}",
             f"s_mov_b32 s{sDELTA}, {STAGE}", f"s_cselect_b32 s{sDELTA}, {-(NS-1)*STAGE & 0xffffffff}, s{sDELTA}", f"s_cselect_b32 s{sSLOT}, 0, s{sSLOT}",
             f"s_cmp_eq_u32 s{sGD}, 1", f"s_cselect_b32 s{T7}, 256, s{sDELTA}"]
        V = [f"v_add_u32 v{vX}, s{sDELTA}, v{vX}", f"v_add_u32 v{vE}, s{sDELTA}, v{vE}", f"v_add_u32 v{vO}, s{sDELTA}, v{vO}",
             f"v_add_u32 v{vG0}, s{T7}, v{vG0}", f"v_add_u32 v{vG1}, s{T7}, v{vG1}"]
        return L, V
    e("s_barrier")
    stamp(1)
    for r in reads(0): e(r)
    e("s_waitcnt lgkmcnt(0)")
    e("s_barrier")
    e(f"s_mov_b32 s{sIT}, 10")
    e(".p2align 3")
    e.label("L_main")
    for half in range(2):
        S, V = advance()
        fill = S + V + reads(1 - half)
        for m in range(32):
            nt, mt = m // 4, m % 4
            a = ACC + (nt * 4 + mt) * 4
            e(f"v_mfma_f32_16x16x32_bf16 v[{a}:{a+3}], v[{WB[half]+4*nt}:{WB[half]+4*nt+3}], v[{XB[half]+4*mt}:{XB[half]+4*mt+3}], v[{a}:{a+3}]")
            if m == 0:
                for s_ in S: e(fill.pop(0))
            if fill: e(fill.pop(0))
        assert not fill
        e("s_waitcnt lgkmcnt(0)")
        if half == 1:
            e(f"s_sub_u32 s{sIT}, s{sIT}, 1"); e(f"s_cmp_lg_u32 s{sIT}, 0")
        e("s_barrier")
    e("s_cbranch_scc1 L_main")
    stamp(2)
    e("v_mov_b32 v233, 0")
    e(f"buffer_load_dword v232, v233, s[{DBG}:{DBG+3}], 0 offen sc1")
    e("s_nop 7")
    e(f"s_cmp_eq_u32 s{sISA}, 1"); e("s_cbranch_scc1 L_epiA")

    e(f"s_lshl_b32 s{T0}, s{sRB}, 1"); e(f"s_add_u32 s{T0}, s{T0}, s{sMH}"); e(f"s_mul_i32 s{T0}, s{T0}, 54")
    e(f"s_lshl_b32 s{T1}, s{sCG}, 3"); e(f"s_lshl_b32 s{T2}, s{sNH}, 2"); e(f"s_add_u32 s{T1}, s{T1}, s{T2}")
    e(f"s_add_u32 s{T0}, s{T0}, s{T1}"); e(f"s_lshl_b32 s{T0}, s{T0}, 12")
    if HP_OFF: e(f"s_add_u32 s{T0}, s{T0}, {HP_OFF}")
    e("v_lshlrev_b32 v234, 4, v1")
    for up in range(4):
        if up == 2:
            e(f"s_cmp_ge_u32 s{T1}, 52"); e("s_cbranch_scc1 L_epiB_done")
        for mt in range(4):
            d = 236 + 4 * ((up * 4 + mt) % 4)
            for tt in range(2):
                a = ACC + ((2 * up + tt) * 4 + mt) * 4
                for r in range(4): e(f"v_max_f32 v{a+r}, 0, v{a+r}")
                e(f"v_pk_mul_f32 v[{a}:{a+1}], v[{a}:{a+1}], v[{a}:{a+1}]")
                e(f"v_pk_mul_f32 v[{a+2}:{a+3}], v[{a+2}:{a+3}], v[{a+2}:{a+3}]")
                e(f"v_cvt_pk_bf16_f32 v{d+2*tt}, v{a}, v{a+1}")
                e(f"v_cvt_pk_bf16_f32 v{d+2*tt+1}, v{a+2}, v{a+3}")
            e(f"buffer_store_dwordx4 v[{d}:{d+3}], v234, s[{WS}:{WS+3}], s{T0} offen offset:{mt*1024} sc1")
        e(f"s_add_u32 s{T0}, s{T0}, 4096")
    e.label("L_epiB_done")
    e("s_branch L_p1_store_done")

    e.label("L_epiA")
    e("v_and_b32 v233, 15, v1"); e("v_lshrrev_b32 v7, 4, v1")
    e(f"s_lshl_b32 s{T0}, s{sMH}, 6")
    e(f"v_add_u32 v233, s{T0}, v233")
    e(f"v_mul_u32_u24 v234, {PQ}, v233")
    e("v_lshl_add_u32 v234, v7, 3, v234")
    e(f"s_lshl_b32 s{T0}, s{sODD}, 5"); e(f"v_add_u32 v235, s{T0}, v234")
    e(f"s_lshl_b32 s{T0}, s{sODD}, 7"); e(f"v_subrev_u32 v236, s{T0}, v234")
    colE = [0, 32, 64, 96, 160, 192, 224, 256, 320, 352, 384, 416, 128, 288, 448]
    e(f"s_cmp_eq_u32 s{sNH}, 1"); e("s_cbranch_scc1 L_epiA_n1")
    def qkv_write(nh):
        for nt in range(8):
            tile = 8 * nh + nt
            if tile == 15: continue
            for mt in range(4):
                a = ACC + (nt * 4 + mt) * 4
                d = 238 + 2 * ((nt * 4 + mt) % 8)
                e(f"v_cvt_pk_bf16_f32 v{d}, v{a}, v{a+1}"); e(f"v_cvt_pk_bf16_f32 v{d+1}, v{a+2}, v{a+3}")
                e(f"ds_write_b64 v{235 if tile < 12 else 236}, v[{d}:{d+1}] offset:{colE[tile] + mt*16*PQ}")
    qkv_write(0)
    e("s_branch L_epiA_w")
    e.label("L_epiA_n1")
    qkv_write(1)
    e(f"s_cmp_eq_u32 s{sCG}, 0"); e("s_cbranch_scc0 L_epiA_w")
    for mt in range(4):
        a = ACC + (7 * 4 + mt) * 4
        e(f"v_cvt_pk_bf16_f32 v238, v{a}, v{a}"); e("v_lshlrev_b32 v238, 16, v238")
        e("v_mul_f32 v238, 0xbfb8aa3b, v238")
        e("v_exp_f32 v238, v238"); e("v_add_f32 v238, 1.0, v238"); e("v_rcp_f32 v238, v238")
        e("v_cvt_pk_bf16_f32 v238, v238, v238"); e(f"v_lshlrev_b32 v{240+mt}, 16, v238")
    e("v_and_b32 v233, 15, v1")
    for mt in range(4):
        e(f"v_add_u32 v238, {16*mt}, v233")
        e("v_lshlrev_b32 v239, 1, v238"); e(f"s_add_u32 s{T0}, s{sT0}, s{sMH}"); e(f"v_add_u32 v239, s{T0}, v239")
        e("v_lshlrev_b32 v244, 2, v239")
        e(f"v_cmp_le_u32 s[{sM}:{sM+1}], 7, v238"); e(f"v_cmp_gt_u32 s[{sM+2}:{sM+3}], 16, v1"); e(f"v_cmp_gt_u32 vcc, 2048, v239")
        e(f"s_and_b64 s[{sM}:{sM+1}], s[{sM}:{sM+1}], s[{sM+2}:{sM+3}]"); e(f"s_and_b64 vcc, vcc, s[{sM}:{sM+1}]")
        e(f"v_mov_b32 v245, {BIG}"); e("s_nop 1"); e("v_cndmask_b32 v244, v245, v244, vcc")
        e(f"s_mov_b32 s{T1}, {G_OFF}")
        e(f"buffer_store_dword v{240+mt}, v244, s[{WS}:{WS+3}], s{T1} offen sc1")
    e.label("L_epiA_w")
    e("s_waitcnt lgkmcnt(0)")
    e.label("L_attn")
    e("s_barrier")
    stamp(3)
    e(f"s_and_b32 s{T0}, s{sWAVE}, 3"); e(f"s_lshr_b32 s{T1}, s{sWAVE}, 2")
    e(f"s_mul_i32 s{T2}, s{T1}, {64*PQ}"); e(f"s_mul_i32 s{T3}, s{T0}, 40"); e(f"s_add_u32 s{T2}, s{T2}, s{T3}")
    e(f"v_mul_u32_u24 v2, {PQ}, v1"); e(f"v_add_u32 v2, s{T2}, v2")
    for kb in range(3):
        e(f"v_subrev_u32 v9, {8-4*kb}, v1"); e("v_max_i32 v9, 0, v9")
        e(f"v_mul_u32_u24 v9, {PQ}, v9"); e(f"v_add_u32 v{3+kb}, s{T2}, v9")
    e("v_and_b32 v9, 48, v1"); e("v_and_b32 v10, 3, v1"); e("v_lshl_add_u32 v9, v10, 2, v9")
    e("v_bfe_u32 v10, v1, 2, 2"); e("v_add_u32 v9, v9, v10")
    for kb in range(3):
        e(f"v_subrev_u32 v10, {8-4*kb}, v9"); e("v_max_i32 v10, 0, v10")
        e(f"v_mul_u32_u24 v10, {PQ}, v10"); e(f"v_add_u32 v{6+kb}, s{T2}, v10")
    Q = 16; K = 28; V = 60; S = 92; O = 104
    for s_ in range(5): e(f"ds_read_b64 v[{Q+2*s_}:{Q+2*s_+1}], v2 offset:{8*s_}")
    for kb in range(3):
        for s_ in range(5): e(f"ds_read_b64 v[{K+10*kb+2*s_}:{K+10*kb+2*s_+1}], v{3+kb} offset:{160+8*s_}")
    for kb in range(3):
        for dg in range(5): e(f"ds_read_b64_tr_b16 v[{V+10*kb+2*dg}:{V+10*kb+2*dg+1}], v{6+kb} offset:{320+8*dg}")
    for r in range(12): e(f"v_mov_b32 v{S+r}, 0")
    for r in range(20): e(f"v_mov_b32 v{O+r}, 0")
    e("v_and_b32 v9, 3, v1")
    e(f"v_cmp_eq_u32 s[{sM}:{sM+1}], 0, v9"); e(f"v_cmp_ge_u32 s[{sM+2}:{sM+3}], 1, v9"); e(f"v_cmp_ge_u32 s[{sM+4}:{sM+5}], 2, v9")
    e("s_waitcnt lgkmcnt(15)")
    for s_ in range(5):
        for kb in range(3):
            e(f"v_mfma_f32_4x4x4_16b_bf16 v[{S+4*kb}:{S+4*kb+3}], v[{K+10*kb+2*s_}:{K+10*kb+2*s_+1}], v[{Q+2*s_}:{Q+2*s_+1}], v[{S+4*kb}:{S+4*kb+3}]")
    Y = 124
    e(f"v_cndmask_b32 v{Y}, v{S+9}, v{S+1}, s[{sM}:{sM+1}]")
    e(f"v_cndmask_b32 v{Y+1}, v{S+10}, v{S+2}, s[{sM+2}:{sM+3}]")
    e(f"v_cndmask_b32 v{Y+2}, v{S+11}, v{S+3}, s[{sM+4}:{sM+5}]")
    ys = [Y, Y+1, Y+2, S+4, S+5, S+6, S+7, S+8]
    e(f"s_cmp_eq_u32 s{sRB}, 0"); e("s_cbranch_scc0 L_nomask")
    e("v_and_b32 v9, 60, v1"); e("v_sub_u32 v9, 15, v9")
    e(f"v_mov_b32 v10, 0xf149f2ca")
    for n, reg in ((4, S+4), (5, S+5), (6, S+6), (7, S+7), (8, S+8)):
        e(f"v_cmp_lt_i32 vcc, {n}, v9"); e(f"v_cndmask_b32 v{reg}, v{reg}, v10, vcc")
    for n, reg, m in ((1, Y, sM), (2, Y+1, sM+2), (3, Y+2, sM+4)):
        e(f"v_mov_b32 v11, {n+8}"); e(f"v_cndmask_b32 v11, v11, {n}, s[{m}:{m+1}]")
        e(f"v_cmp_lt_i32 vcc, v11, v9"); e(f"v_cndmask_b32 v{reg}, v{reg}, v10, vcc")
    e.label("L_nomask")
    e(f"v_max3_f32 v9, v{ys[0]}, v{ys[1]}, v{ys[2]}"); e(f"v_max3_f32 v10, v{ys[3]}, v{ys[4]}, v{ys[5]}")
    e(f"v_max3_f32 v9, v9, v{ys[6]}, v{ys[7]}"); e("v_max_f32 v9, v9, v10")
    CS = 0.22360679774997896 * 1.4426950408889634
    import struct
    csb = struct.unpack('<I', struct.pack('<f', CS))[0]
    e(f"s_mov_b32 s{T4}, {csb}")
    e(f"v_mul_f32 v9, s{T4}, v9")
    for y in ys: e(f"v_fma_f32 v{y}, v{y}, s{T4}, -v9")
    for y in ys: e(f"v_exp_f32 v{y}, v{y}")
    e(f"v_add_f32 v9, v{ys[0]}, v{ys[1]}"); e(f"v_add_f32 v10, v{ys[2]}, v{ys[3]}")
    e(f"v_add_f32 v11, v{ys[4]}, v{ys[5]}"); e(f"v_add_f32 v12, v{ys[6]}, v{ys[7]}")
    e("v_add_f32 v9, v9, v10"); e("v_add_f32 v11, v11, v12"); e("v_add_f32 v9, v9, v11")
    e("v_rcp_f32 v9, v9")
    for y in ys: e(f"v_mul_f32 v{y}, v{y}, v9")
    P = 128
    e(f"v_cndmask_b32 v{S+1}, 0, v{Y}, s[{sM}:{sM+1}]"); e(f"v_cndmask_b32 v{S+9}, v{Y}, 0, s[{sM}:{sM+1}]")
    e(f"v_cndmask_b32 v{S+2}, 0, v{Y+1}, s[{sM+2}:{sM+3}]"); e(f"v_cndmask_b32 v{S+10}, v{Y+1}, 0, s[{sM+2}:{sM+3}]")
    e(f"v_cndmask_b32 v{S+3}, 0, v{Y+2}, s[{sM+4}:{sM+5}]"); e(f"v_cndmask_b32 v{S+11}, v{Y+2}, 0, s[{sM+4}:{sM+5}]")
    e(f"v_mov_b32 v{S}, 0")
    for kb in range(3):
        e(f"v_cvt_pk_bf16_f32 v{P+2*kb}, v{S+4*kb}, v{S+4*kb+1}"); e(f"v_cvt_pk_bf16_f32 v{P+2*kb+1}, v{S+4*kb+2}, v{S+4*kb+3}")
    e("s_waitcnt lgkmcnt(0)")
    for kb in range(3):
        for dg in range(5):
            e(f"v_mfma_f32_4x4x4_16b_bf16 v[{O+4*dg}:{O+4*dg+3}], v[{V+10*kb+2*dg}:{V+10*kb+2*dg+1}], v[{P+2*kb}:{P+2*kb+1}], v[{O+4*dg}:{O+4*dg+3}]")
    e(f"s_mul_i32 s{T2}, s{T1}, {64*PO}"); e(f"s_mul_i32 s{T3}, s{T0}, 40"); e(f"s_add_u32 s{T2}, s{T2}, s{T3}"); e(f"s_add_u32 s{T2}, s{T2}, {OB}")
    e(f"v_mul_u32_u24 v2, {PO}, v1"); e(f"v_add_u32 v2, s{T2}, v2")
    for dg in range(5):
        e(f"v_cvt_pk_bf16_f32 v{Q+2*dg}, v{O+4*dg}, v{O+4*dg+1}"); e(f"v_cvt_pk_bf16_f32 v{Q+2*dg+1}, v{O+4*dg+2}, v{O+4*dg+3}")
        e(f"ds_write_b64 v2, v[{Q+2*dg}:{Q+2*dg+1}] offset:{8*dg}")
    e("s_waitcnt lgkmcnt(0)")
    e("s_barrier")
    for r in range(3):
        if r == 2:
            e(f"s_cmp_ge_u32 s{sWAVE}, 4"); e("s_cbranch_scc1 L_ostore_done")
        e(f"s_add_u32 s{T0}, s{sWAVE}, {8*r}"); e(f"s_lshr_b32 s{T1}, s{T0}, 1"); e(f"s_and_b32 s{T0}, s{T0}, 1")
        e(f"s_lshl_b32 s{T2}, s{T0}, 6")
        e(f"v_add_u32 v2, s{T2}, v1")
        e("v_add_u32 v3, 14, v2")
        e("v_and_b32 v4, 1, v3"); e("v_lshrrev_b32 v5, 1, v3"); e("v_lshl_add_u32 v4, v4, 6, v5")
        e("v_min_u32 v4, 127, v4")
        e(f"v_mul_u32_u24 v4, {PO}, v4"); e(f"s_lshl_b32 s{T3}, s{T1}, 4"); e(f"s_add_u32 s{T3}, s{T3}, {OB}")
        e(f"v_add_u32 v4, s{T3}, v4")
        e(f"ds_read_b128 v[8:11], v4")
        e(f"s_add_u32 s{T3}, s{sT0}, 14"); e(f"v_add_u32 v5, s{T3}, v2")
        e(f"s_mul_i32 s{T4}, s{sCG}, 10"); e(f"s_add_u32 s{T4}, s{T4}, s{T1}")
        e(f"s_lshr_b32 s{T5}, s{T4}, 2"); e(f"s_and_b32 s{T4}, s{T4}, 3")
        e(f"s_lshl_b32 s{T5}, s{T5}, 12"); e(f"s_lshl_b32 s{T4}, s{T4}, 8"); e(f"s_add_u32 s{T5}, s{T5}, s{T4}"); e(f"s_add_u32 s{T5}, s{T5}, {OP_OFF}")
        e("v_lshrrev_b32 v6, 6, v5"); e(f"v_mul_u32_u24 v6, {20*4096}, v6")
        e("v_bfe_u32 v7, v5, 4, 2"); e("v_lshl_add_u32 v6, v7, 10, v6")
        e("v_and_b32 v7, 15, v5"); e("v_lshl_add_u32 v6, v7, 4, v6")
        e(f"v_cmp_gt_u32 vcc, 114, v2"); e(f"s_mov_b64 s[{sM}:{sM+1}], vcc"); e(f"v_cmp_gt_u32 vcc, 2048, v5"); e(f"s_and_b64 vcc, vcc, s[{sM}:{sM+1}]")
        e(f"v_mov_b32 v7, {BIG}"); e("s_nop 1"); e("v_cndmask_b32 v6, v7, v6, vcc")
        e("s_waitcnt lgkmcnt(0)")
        e(f"buffer_store_dwordx4 v[8:11], v6, s[{WS}:{WS+3}], s{T5} offen sc1")
    e.label("L_ostore_done")

    e.label("L_p1_store_done")
    e("s_waitcnt vmcnt(0)")
    e("s_barrier")
    stamp(4)
    e(f"s_cmp_eq_u32 s{sWAVE}, 0"); e("s_cbranch_scc0 L_flag_done")
    e(f"s_mov_b32 s{T0}, 0x40000")
    e.label("L_chk")
    e(f"v_cmp_eq_u32 vcc, 1, v232"); e("s_cbranch_vccnz L_chk_ok")
    e("v_mov_b32 v233, 0")
    e(f"buffer_load_dword v232, v233, s[{DBG}:{DBG+3}], 0 offen sc1"); e("s_waitcnt vmcnt(0)")
    e(f"s_sub_u32 s{T0}, s{T0}, 1"); e(f"s_cmp_lg_u32 s{T0}, 0"); e("s_cbranch_scc1 L_chk")
    e.label("L_chk_ok")
    e(f"s_lshl_b32 s{T0}, s{sFLAG}, 6"); e(f"s_add_u32 s{T0}, s{T0}, {FL_OFF}")
    e("v_mov_b32 v233, 0"); e("v_mov_b32 v234, 1")
    e(f"s_mov_b64 s[{sEX}:{sEX+1}], exec"); e("s_mov_b64 exec, 1")
    e(f"buffer_store_dword v234, v233, s[{WS}:{WS+3}], s{T0} offen sc1")
    e(f"s_mov_b64 exec, s[{sEX}:{sEX+1}]")
    e.label("L_flag_done")
    if o['stop'] == 'p1':
        e("s_branch L_fin")
    else:
        e("s_branch L_phase3")

    e.label("L_loader")
    vm = VM(e)
    vx0, vx1, vw0, vw1 = 2, 3, 4, 5
    e(f"s_sub_u32 s{sLW}, s{sWAVE}, 4")
    srd(e, M1, 24, 1280)
    e(f"s_mul_i32 s{T0}, s{sLW}, 160")
    e(f"v_add_u32 v20, s{T0}, v1"); e("v_add_u32 v21, 64, v20"); e("v_and_b32 v22, 31, v1"); e(f"v_add_u32 v22, s{T0}, v22"); e("v_add_u32 v22, 128, v22")
    for k in range(3): e(f"v_lshlrev_b32 v{24+k}, 1, v{20+k}")
    stamp(9)
    for k in range(3):
        e(f"buffer_load_ushort v{28+k}, v{24+k}, s[{M1}:{M1+3}], 0 offen"); vm.issue('gate')
    e(f"s_lshl_b32 s{T0}, s2, 2"); e(f"s_add_u32 s{T0}, s{T0}, s{sLW}")
    e(f"s_mul_i32 s{T1}, s{T0}, 205"); e(f"s_lshr_b32 s{T1}, s{T1}, 11")
    e(f"s_mul_i32 s{T2}, s{T1}, 10"); e(f"s_sub_u32 s{T2}, s{T0}, s{T2}")
    e(f"s_cmp_lt_u32 s{T1}, 20")
    e(f"s_cselect_b32 s{M2}, s12, s20"); e(f"s_cselect_b32 s{T3}, s13, s21")
    csel(e, M2+2, 640*1280, 1728*1280)
    e(f"s_cselect_b32 s{T4}, 0, 20")
    e(f"s_and_b32 s{M2+1}, s{T3}, 0xffff"); e(f"s_mov_b32 s{M2+3}, 0x20000")
    e(f"s_sub_u32 s{T4}, s{T1}, s{T4}"); e(f"s_mul_i32 s{T4}, s{T4}, {32*1280}")
    e("v_lshrrev_b32 v6, 3, v1"); e("v_mul_u32_u24 v6, 1280, v6"); e("v_and_b32 v7, 7, v1"); e("v_lshl_add_u32 v6, v7, 4, v6")
    e(f"s_lshl_b32 s{T5}, s{T2}, 7"); e(f"v_add_u32 v6, s{T5}, v6")
    e(f"s_cmp_lt_u32 s{T0}, 740"); e(f"s_cselect_b32 s{T6}, 0, {BIG}")
    e(f"v_or_b32 v6, s{T6}, v6")
    e(f"s_lshl_b32 s{T5}, s{sLW}, 12"); e(f"s_add_u32 s{T5}, s{T5}, {RSCR}")
    for d in range(4):
        e(f"s_add_u32 m0, s{T5}, {d*1024}")
        e(f"buffer_load_dwordx4 v6, s[{M2}:{M2+3}], s{T4} offen lds"); vm.issue('rp')
        e(f"s_add_u32 s{T4}, s{T4}, {8*1280}")
    sID, sS, sC10, sSCR, sINV = 84 + 0, 85, 90, 91, 92
    e(f"s_mov_b32 s{sID}, s{T0}"); e(f"s_mov_b32 s{sS}, s{T1}"); e(f"s_mov_b32 s{sC10}, s{T2}"); e(f"s_mov_b32 s{sSCR}, s{T5}"); e(f"s_mov_b32 s{sINV}, s{T6}")
    e("v_lshrrev_b32 v8, 2, v1")
    e("v_lshrrev_b32 v9, 4, v1"); e("v_sub_u32 v9, 0, v9"); e("v_and_b32 v9, 3, v9")
    e("v_and_b32 v10, 3, v1"); e("v_xor_b32 v9, v9, v10"); e("v_lshlrev_b32 v9, 4, v9")
    e(f"s_cmp_eq_u32 s{sISA}, 1"); e(f"s_cselect_b32 s{T0}, 1, 0")
    e(f"v_lshlrev_b32 v8, s{T0}, v8")
    for tt in range(2):
        e(f"s_lshl_b32 s{T1}, s{sLW}, 1"); e(f"s_add_u32 s{T1}, s{T1}, {tt}")
        e(f"s_and_b32 s{T2}, s{T1}, 3"); e(f"s_lshl_b32 s{T2}, s{T2}, 5"); e(f"s_lshr_b32 s{T3}, s{T1}, 2")
        e(f"s_add_u32 s{T2}, s{T2}, s{T3}"); e(f"s_add_u32 s{T2}, s{T2}, s{sT0}")
        e(f"s_lshl_b32 s{T3}, s{sRB}, 7"); e(f"s_lshl_b32 s{T4}, s{T1}, 4"); e(f"s_add_u32 s{T3}, s{T3}, s{T4}")
        e(f"s_cmp_eq_u32 s{sISA}, 1"); e(f"s_cselect_b32 s{T2}, s{T2}, s{T3}")
        e(f"v_add_u32 v10, s{T2}, v8")
        e(f"v_mul_u32_u24 v11, 1280, v10"); e("v_add_u32 v11, v11, v9")
        e(f"v_cmp_gt_u32 vcc, 2048, v10"); e(f"v_mov_b32 v12, {BIG}"); e("s_nop 0")
        e(f"v_cndmask_b32 v{vx0+tt}, v12, v11, vcc")
    e("v_lshrrev_b32 v8, 2, v1"); e(f"v_mul_lo_u32 v8, v8, s{sPITCH}")
    e("v_and_b32 v9, 1, v1"); e("v_lshl_add_u32 v8, v9, 4, v8")
    e("v_lshrrev_b32 v9, 1, v1"); e("v_lshrrev_b32 v10, 5, v1"); e("v_xor_b32 v9, v9, v10"); e("v_and_b32 v9, 1, v9")
    e("v_cmp_eq_u32 vcc, 1, v9")
    e(f"s_mov_b64 s[94:95], vcc")
    for pp in range(2):
        e(f"s_lshl_b32 s{T1}, s{sLW}, 1"); e(f"s_add_u32 s{T1}, s{T1}, {pp}")
        e(f"s_lshl_b32 s{T2}, s{sCG}, 9"); e(f"s_lshl_b32 s{T3}, s{T1}, 6"); e(f"s_add_u32 s{T2}, s{T2}, s{T3}")
        e(f"s_add_u32 s{T3}, s{T2}, 32")
        e(f"s_cmp_ge_u32 s{T2}, 3456"); e(f"s_cselect_b32 s{T2}, {BIG}, s{T2}"); e(f"s_cselect_b32 s{T3}, {BIG}, s{T3}")
        e(f"s_cmp_eq_u32 s{sISA}, 1"); lab = e.newlabel('wB'); e(f"s_cbranch_scc0 {lab}")
        e(f"s_mul_i32 s{T4}, s{sCG}, 160")
        lab6 = e.newlabel('p6'); e(f"s_cmp_lt_u32 s{T1}, 6"); e(f"s_cbranch_scc0 {lab6}")
        e(f"s_lshr_b32 s{T2}, s{T1}, 1"); e(f"s_mul_i32 s{T2}, s{T2}, 1280"); e(f"s_add_u32 s{T2}, s{T2}, s{T4}")
        e(f"s_and_b32 s{T3}, s{T1}, 1"); e(f"s_lshl_b32 s{T3}, s{T3}, 6"); e(f"s_add_u32 s{T2}, s{T2}, s{T3}")
        e(f"s_lshl_b32 s{T3}, s{sODD}, 5"); e(f"s_add_u32 s{T2}, s{T2}, s{T3}"); e(f"s_add_u32 s{T3}, s{T2}, 32")
        e(f"s_branch {lab}")
        e.label(lab6)
        e(f"s_cmp_eq_u32 s{sODD}, 1"); e(f"s_cselect_b32 s{T2}, 0, 128"); e(f"s_add_u32 s{T2}, s{T2}, s{T4}")
        e(f"s_add_u32 s{T3}, s{T2}, 1280")
        e(f"s_cmp_eq_u32 s{T1}, 7"); lab7 = e.newlabel('p7'); e(f"s_cbranch_scc0 {lab}")
        e(f"s_add_u32 s{T2}, s{T2}, 2560"); e(f"s_mov_b32 s{T3}, {BIG}")
        e.label(lab)
        e(f"v_mov_b32 v10, s{T2}"); e(f"v_mov_b32 v11, s{T3}")
        e(f"v_cndmask_b32 v10, v10, v11, s[94:95]")
        e(f"v_add_u32 v{vw0+pp}, v10, v8")
    e(f"s_lshl_b32 s{sLX}, s{sLW}, 11"); e(f"s_lshl_b32 s{sLWb}, s{sLW}, 12"); e(f"s_add_u32 s{sLWb}, s{sLWb}, 8192")
    e(f"s_mov_b32 s{sKX}, 0"); e(f"s_mov_b32 s{sKW0}, 0"); e(f"s_lshl_b32 s{sKW1}, s{sPITCH}, 4")
    e(f"s_lshl_b32 s{T7}, s{sPITCH}, 5")
    def stage(j):
        slot = (j % NS) * STAGE
        for tt in range(2):
            e(f"s_add_u32 m0, s{sLX}, {slot + tt*1024}")
            e(f"buffer_load_dwordx4 v{vx0+tt}, s[{X}:{X+3}], s{sKX} offen lds"); vm.issue(f'st{j}')
        for pp in range(2):
            for hf in range(2):
                e(f"s_add_u32 m0, s{sLWb}, {slot + pp*2048 + hf*1024}")
                e(f"buffer_load_dwordx4 v{vw0+pp}, s[{W}:{W+3}], s{sKW1 if hf else sKW0} offen lds"); vm.issue(f'st{j}')
        e(f"s_add_u32 s{sKX}, s{sKX}, 64"); e(f"s_add_u32 s{sKW0}, s{sKW0}, s{T7}"); e(f"s_add_u32 s{sKW1}, s{sKW1}, s{T7}")
    stamp(10)
    for j in range(NS):
        stage(j)
        if j == 0: stamp(11)
    stamp(1)
    vm.wait('gate')
    stamp(12)
    for k in range(3):
        e(f"v_lshl_or_b32 v32, v{28+k}, 16, v{28+k}"); e("v_mov_b32 v33, v32")
        e(f"v_lshlrev_b32 v34, 3, v{20+k}"); e(f"v_add_u32 v34, {GATE4}, v34"); e(f"ds_write_b64 v34, v[32:33]")
    e("v_lshrrev_b32 v7, 4, v1"); e("v_bfe_u32 v8, v1, 2, 2"); e("v_and_b32 v9, 3, v1")
    e(f"s_cmp_lt_u32 s{sS}, 20"); e(f"s_cselect_b32 s{T0}, 3, 2"); csel(e, T1, 512, 2048)
    e(f"v_lshlrev_b32 v10, s{T0}, v7"); e("v_add_u32 v10, v10, v8")
    e("v_lshlrev_b32 v10, 7, v10"); e("v_lshl_add_u32 v10, v9, 3, v10"); e(f"v_add_u32 v10, s{sSCR}, v10")
    e(f"v_add_u32 v11, s{T1}, v10")
    vm.wait('rp')
    stamp(13)
    for tt in range(4):
        e(f"ds_read_b64_tr_b16 v[{40+4*tt}:{41+4*tt}], v10 offset:{32*tt}")
        e(f"ds_read_b64_tr_b16 v[{42+4*tt}:{43+4*tt}], v11 offset:{32*tt}")
    e("v_lshlrev_b32 v12, 4, v1"); e(f"v_or_b32 v12, s{sINV}, v12")
    e("s_waitcnt lgkmcnt(0)")
    for tt in range(4):
        e(f"s_lshl_b32 s{T0}, s{sC10}, 2"); e(f"s_add_u32 s{T0}, s{T0}, {tt}")
        e(f"s_mul_i32 s{T1}, s{T0}, 52"); e(f"s_lshr_b32 s{T1}, s{T1}, 8")
        e(f"s_mul_i32 s{T2}, s{T1}, 5"); e(f"s_sub_u32 s{T2}, s{T0}, s{T2}")
        e(f"s_mul_i32 s{T1}, s{T1}, 74"); e(f"s_add_u32 s{T1}, s{T1}, s{sS}"); e(f"s_mul_i32 s{T1}, s{T1}, 5")
        e(f"s_add_u32 s{T1}, s{T1}, s{T2}"); e(f"s_lshl_b32 s{T1}, s{T1}, 10"); e(f"s_add_u32 s{T1}, s{T1}, {WP_OFF}")
        e(f"s_and_b32 s{T1}, s{T1}, 0x00ffffff")
        e(f"buffer_store_dwordx4 v[{40+4*tt}:{43+4*tt}], v12, s[{WS}:{WS+3}], s{T1} offen sc1"); vm.issue('rps')
    vm.wait('st0')
    stamp(14)
    e("s_barrier")
    vm.wait('st1')
    e("s_barrier")
    for j in range(20):
        if j + NS < 20: stage(j + NS)
        if j == 4:
            e(f"s_lshl_b32 s{T0}, s2, 0"); e(f"s_and_b32 s{T0}, s{T0}, 31"); e(f"s_lshl_b32 s{T0}, s{T0}, 2"); e(f"s_add_u32 s{T0}, s{T0}, 128")
            e(f"v_mov_b32 v13, s{T0}"); e("v_mov_b32 v14, 1")
            e(f"s_cmp_lt_u32 s2, 185"); e(f"s_cselect_b32 s{T1}, 0, {BIG}"); e(f"s_cmp_eq_u32 s{sLW}, 0"); e(f"s_cselect_b32 s{T1}, s{T1}, {BIG}")
            e(f"v_or_b32 v13, s{T1}, v13"); e(f"v_mov_b32 v15, {BIG}"); e("v_cmp_eq_u32 vcc, 0, v1"); e("s_nop 1")
            e("v_cndmask_b32 v13, v15, v13, vcc")
            e(f"buffer_atomic_add v14, v13, s[{DBG}:{DBG+3}], 0 offen"); vm.issue('atom')
        if j + 2 < 20:
            vm.wait(f'st{j+2}')
            if j == 3: assert 'rps' not in vm.q
        e("s_barrier")
    stamp(2)
    e(f"s_cmp_eq_u32 s{sISA}, 1"); e("s_cbranch_scc1 L_attn")
    e("s_branch L_p1_store_done")

    e.label("L_phase3")
    A3 = 8; FB = 88; ND = 4
    e(f"s_cmp_ge_u32 s{sWAVE}, 4"); e(f"s_cselect_b32 s{T0}, 6, -2")
    e(f"s_sub_u32 s{T0}, s{sWAVE}, s{T0}")
    e(f"s_add_u32 s{T1}, s{sWAVE}, -4"); e(f"s_cmp_lt_u32 s{T1}, 2"); e("s_cbranch_scc1 L_p3_roleA")
    e(f"s_mul_i32 s{T2}, s{T0}, 9")
    e(f"s_mul_i32 s{sACT}, s{sI3}, 54"); e(f"s_add_u32 s{sACT}, s{sACT}, s{T2}"); e(f"s_lshl_b32 s{sACT}, s{sACT}, 12")
    if HP_OFF: e(f"s_add_u32 s{sACT}, s{sACT}, {HP_OFF}")
    e(f"s_add_u32 s{T3}, s{T2}, 20")
    e(f"s_mov_b32 s{T6}, {BIG}")
    e(f"s_lshr_b32 s{T4}, s{sI3}, 1"); e(f"s_mul_i32 s{T4}, s{T4}, 7"); e(f"s_add_u32 s{T4}, s{T4}, 144")
    e(f"s_lshr_b32 s{T5}, s{T2}, 3"); e(f"s_add_u32 s{T5}, s{T5}, s{T4}")
    e(f"s_add_u32 s{T2}, s{T2}, 8"); e(f"s_lshr_b32 s{T2}, s{T2}, 3"); e(f"s_add_u32 s{T2}, s{T2}, s{T4}")
    e(f"v_mov_b32 v2, s{T5}"); e(f"v_mov_b32 v3, s{T2}"); e("v_cmp_gt_u32 vcc, 4, v1"); e("s_nop 1"); e("v_cndmask_b32 v2, v3, v2, vcc")
    e("s_branch L_p3_role_done")
    e.label("L_p3_roleA")
    e(f"s_mul_i32 s{T3}, s{T1}, 10")
    e(f"s_mul_i32 s{sACT}, s{sI3}, 20"); e(f"s_add_u32 s{sACT}, s{sACT}, s{T3}"); e(f"s_lshl_b32 s{sACT}, s{sACT}, 12"); e(f"s_add_u32 s{sACT}, s{sACT}, {OP_OFF}")
    e(f"s_mov_b32 s{T6}, 0")
    e(f"s_lshl_b32 s{T4}, s{sI3}, 6"); e(f"s_mul_i32 s{T5}, s{T4}, 575"); e(f"s_lshr_b32 s{T5}, s{T5}, 16")
    e(f"s_add_u32 s{T4}, s{T4}, 63"); e(f"s_mul_i32 s{T4}, s{T4}, 575"); e(f"s_lshr_b32 s{T4}, s{T4}, 16")
    e(f"s_lshl_b32 s{T5}, s{T5}, 3"); e(f"s_lshl_b32 s{T4}, s{T4}, 3"); e(f"s_lshl_b32 s{T1}, s{T1}, 2")
    e(f"s_add_u32 s{T5}, s{T5}, s{T1}"); e(f"s_add_u32 s{T4}, s{T4}, s{T1}")
    e(f"v_mov_b32 v2, s{T5}"); e(f"v_mov_b32 v3, s{T4}"); e("v_cmp_gt_u32 vcc, 4, v1"); e("s_nop 1"); e("v_cndmask_b32 v2, v3, v2, vcc")
    e("v_and_b32 v3, 3, v1"); e("v_add_u32 v2, v2, v3")
    e.label("L_p3_role_done")
    e(f"s_mul_i32 s{sWP}, s{sJ3}, 74"); e(f"s_add_u32 s{sWP}, s{sWP}, s{T3}"); e(f"s_mul_i32 s{sWP}, s{sWP}, 5120"); e(f"s_add_u32 s{sWP}, s{sWP}, {WP_OFF}")
    e(f"s_add_u32 s{sWP4}, s{sWP}, 4096")
    e("v_lshlrev_b32 v4, 4, v1"); e(f"v_or_b32 v5, s{T6}, v4")
    e("v_lshlrev_b32 v2, 6, v2"); e(f"v_mov_b32 v3, {BIG}"); e("v_cmp_gt_u32 vcc, 8, v1"); e("s_nop 1"); e("v_cndmask_b32 v2, v3, v2, vcc")
    e("v_lshlrev_b32 v6, 2, v1"); e("v_add_u32 v6, 128, v6"); e("v_cmp_gt_u32 vcc, 32, v1"); e("s_nop 1"); e("v_cndmask_b32 v6, v3, v6, vcc")
    e("v_mov_b32 v7, 5"); e("v_cmp_gt_u32 vcc, 25, v1"); e("s_nop 1"); e("v_cndmask_b32 v7, v7, 6, vcc")
    e("v_cmp_gt_u32 vcc, 32, v1"); e("s_nop 1"); e("v_cndmask_b32 v7, 0, v7, vcc")
    e(f"s_mov_b32 s{T0}, 0x40000"); e(f"s_mov_b32 s{T1}, {FL_OFF}")
    e.label("L_poll_rp")
    e(f"buffer_load_dword v88, v6, s[{DBG}:{DBG+3}], 0 offen sc1"); e("s_waitcnt vmcnt(0)")
    e("v_cmp_lt_u32 vcc, v88, v7"); e("s_cbranch_vccz L_poll_rp_ok")
    e(f"s_sub_u32 s{T0}, s{T0}, 1"); e(f"s_cmp_lg_u32 s{T0}, 0"); e("s_cbranch_scc1 L_poll_rp")
    e.label("L_poll_rp_ok")
    e("v_mov_b32 v7, 0"); e("v_cmp_gt_u32 vcc, 8, v1"); e("s_nop 1"); e("v_cndmask_b32 v7, 0, 1, vcc")
    e.label("L_poll")
    e(f"buffer_load_dword v88, v2, s[{WS}:{WS+3}], s{T1} offen sc1"); e("s_waitcnt vmcnt(0)")
    e("v_cmp_ne_u32 vcc, v88, v7"); e("s_cbranch_vccz L_poll_ok")
    e(f"s_sub_u32 s{T0}, s{T0}, 1"); e(f"s_cmp_lg_u32 s{T0}, 0"); e("s_cbranch_scc1 L_poll")
    e.label("L_poll_ok")
    stamp(5)
    for r in range(80): e(f"v_mov_b32 v{A3+r}, 0")
    vm3 = VM(e)
    def loads3(s_):
        b = FB + 36 * (s_ % ND)
        vo = 5 if s_ == 9 else 4
        for mt in range(4):
            e(f"buffer_load_dwordx4 v[{b+4*mt}:{b+4*mt+3}], v{vo}, s[{WS}:{WS+3}], s{sACT} offen offset:{mt*1024} sc1"); vm3.issue(f's{s_}')
        for t in range(5):
            if t < 4: e(f"buffer_load_dwordx4 v[{b+16+4*t}:{b+16+4*t+3}], v{vo}, s[{WS}:{WS+3}], s{sWP} offen offset:{t*1024} sc1")
            else: e(f"buffer_load_dwordx4 v[{b+16+4*t}:{b+16+4*t+3}], v{vo}, s[{WS}:{WS+3}], s{sWP4} offen sc1")
            vm3.issue(f's{s_}')
        e(f"s_add_u32 s{sACT}, s{sACT}, 4096"); e(f"s_add_u32 s{sWP}, s{sWP}, 5120"); e(f"s_add_u32 s{sWP4}, s{sWP4}, 5120")
    for s_ in range(ND - 1): loads3(s_)
    for s_ in range(10):
        if s_ + ND - 1 < 10: loads3(s_ + ND - 1)
        vm3.wait(f's{s_}')
        b = FB + 36 * (s_ % ND)
        for t in range(5):
            for mt in range(4):
                a = A3 + (t * 4 + mt) * 4
                e(f"v_mfma_f32_16x16x32_bf16 v[{a}:{a+3}], v[{b+16+4*t}:{b+16+4*t+3}], v[{b+4*mt}:{b+4*mt+3}], v[{a}:{a+3}]")
    stamp(6)
    e(f"s_mul_i32 s{T0}, s{sWAVE}, 20480"); e(f"v_add_u32 v2, s{T0}, v4")
    e("s_nop 4")
    for tau in range(20): e(f"ds_write_b128 v2, v[{A3+4*tau}:{A3+4*tau+3}] offset:{tau*1024}")
    e("s_waitcnt lgkmcnt(0)")
    e("s_barrier")
    srd(e, M1, 26, 2048 * 1280)
    srd(e, M2, 22, 1280)
    for r in range(3):
        if r == 2:
            e(f"s_cmp_ge_u32 s{sWAVE}, 4"); e("s_cbranch_scc1 L_fin")
        e(f"s_add_u32 s{T0}, s{sWAVE}, {8*r}"); e(f"s_lshr_b32 s{T1}, s{T0}, 2"); e(f"s_and_b32 s{T2}, s{T0}, 3")
        e(f"s_lshl_b32 s{T3}, s{T0}, 10"); e(f"v_add_u32 v2, s{T3}, v4")
        for w in range(8):
            off = w * 20480
            if off < 65536: e(f"ds_read_b128 v[{8+4*w}:{11+4*w}], v2 offset:{off}")
            else:
                if w == 4: e("v_add_u32 v3, 0x14000, v2")
                e(f"ds_read_b128 v[{8+4*w}:{11+4*w}], v3 offset:{off - 0x14000}")
        e("v_and_b32 v40, 15, v1"); e(f"s_lshl_b32 s{T4}, s{sI3}, 6"); e(f"s_lshl_b32 s{T5}, s{T2}, 4"); e(f"s_add_u32 s{T4}, s{T4}, s{T5}")
        e(f"v_add_u32 v40, s{T4}, v40")
        e("v_lshlrev_b32 v41, 2, v40"); e(f"s_mov_b32 s{T5}, {G_OFF}")
        e(f"buffer_load_dword v42, v41, s[{WS}:{WS+3}], s{T5} offen sc1")
        e("v_lshrrev_b32 v43, 4, v1"); e(f"s_mul_i32 s{T4}, s{sJ3}, 160"); e(f"s_lshl_b32 s{T5}, s{T1}, 5"); e(f"s_add_u32 s{T4}, s{T4}, s{T5}")
        e("v_lshlrev_b32 v43, 3, v43"); e(f"v_add_u32 v43, s{T4}, v43")
        e(f"buffer_load_dwordx2 v[44:45], v43, s[{M2}:{M2+3}], 0 offen")
        e("v_mul_u32_u24 v46, 1280, v40"); e("v_add_u32 v46, v46, v43")
        e("s_waitcnt lgkmcnt(0)")
        for q in range(4):
            e(f"v_add_f32 v{48+q}, v{8+16+q}, v{8+20+q}")
            e(f"v_add_f32 v{8+q}, v{8+q}, v{8+4+q}"); e(f"v_add_f32 v{8+8+q}, v{8+8+q}, v{8+12+q}")
            e(f"v_add_f32 v{8+24+q}, v{8+24+q}, v{8+28+q}")
            e(f"v_add_f32 v{8+q}, v{8+q}, v{8+8+q}"); e(f"v_add_f32 v{8+q}, v{8+q}, v{8+24+q}")
        e("s_waitcnt vmcnt(0)")
        e("v_lshlrev_b32 v52, 16, v44"); e("v_and_b32 v53, 0xffff0000, v44"); e("v_lshlrev_b32 v54, 16, v45"); e("v_and_b32 v55, 0xffff0000, v45")
        e("v_sub_f32 v56, 1.0, v42")
        for q in range(4):
            e(f"v_add_f32 v{8+q}, v{8+q}, v{52+q}"); e(f"v_mul_f32 v{8+q}, v{8+q}, v56"); e(f"v_fma_f32 v{8+q}, v{48+q}, v42, v{8+q}")
        e("v_cvt_pk_bf16_f32 v58, v8, v9"); e("v_cvt_pk_bf16_f32 v59, v10, v11")
        e(f"buffer_store_dwordx2 v[58:59], v46, s[{M1}:{M1+3}], 0 offen")
    e.label("L_fin")
    if o['ts']:
        stamp(7)
        e(f"s_lshl_b32 s{T0}, s2, 3"); e(f"s_add_u32 s{T0}, s{T0}, s{sWAVE}"); e(f"s_lshl_b32 s{T0}, s{T0}, 6"); e(f"s_add_u32 s{T0}, s{T0}, {TS_OFF}")
        e("v_and_b32 v1, 63, v0")
        e("v_lshlrev_b32 v2, 2, v1"); e("s_mov_b64 exec, 0xffff")
        e(f"buffer_store_dword v255, v2, s[{WS}:{WS+3}], s{T0} offen")
    if o['span']:
        stamp(7)
        e("v_and_b32 v1, 63, v0")
        e("v_readlane_b32 s56, v255, 8"); e("s_nop 3"); e("v_subrev_u32 v255, s56, v255")
        e(f"s_lshl_b32 s57, s2, 3"); e(f"s_add_u32 s57, s57, s{sWAVE}")
        e(f"s_cmp_eq_u32 s57, {o['span_a']}"); e("s_cselect_b32 s58, 4, -1")
        e(f"s_cmp_eq_u32 s57, {o['span_b']}"); e("s_cselect_b32 s58, 32, s58")
        e("s_cmp_eq_u32 s58, -1"); e("s_cbranch_scc1 L_end")
        e("v_lshlrev_b32 v2, 2, v1"); e("v_add_u32 v2, s58, v2"); e("s_mov_b64 exec, 0xfe")
        e(f"buffer_store_dword v255, v2, s[{DBG}:{DBG+3}], 0 offen")
    e.label("L_end")
    body, nh = e.text()
    hdr = open('gated_mix__sliding_local_dilated__dense_activation_squared_relu__prompt.s.ref').read().split('\n')
    comments = [l for l in hdr if l.startswith(';') and '@launch' not in l and 'Override launch' not in l and 'grid=ceil' not in l]
    return "\n".join(comments) + f"""
; @launch grid=(256,1,1) block=(512,1,1) lds={LDS_BYTES}
.amdgcn_target "amdgcn-amd-amdhsa--gfx950"
.text
.globl {KNAME}
.p2align 8
.type {KNAME},@function
{KNAME}:
{body}
    s_endpgm
.section .rodata,"a"
.p2align 6
.amdhsa_kernel {KNAME}
  .amdhsa_next_free_vgpr 256
  .amdhsa_next_free_sgpr 102
  .amdhsa_accum_offset 256
  .amdhsa_group_segment_fixed_size 0
  .amdhsa_kernarg_size 96
  .amdhsa_user_sgpr_count 2
  .amdhsa_user_sgpr_kernarg_segment_ptr 1
  .amdhsa_system_sgpr_workgroup_id_x 1
.end_amdhsa_kernel
"""

if __name__ == "__main__":
    import argparse
    ap = argparse.ArgumentParser()
    ap.add_argument('-o', default='k.s'); ap.add_argument('--stop', default=None); ap.add_argument('--ts', action='store_true'); ap.add_argument('--span', action='store_true')
    a = ap.parse_args()
    open(a.o, 'w').write(gen(dict(stop=a.stop, ts=a.ts, span=a.span)))
```

```python
import sys
from emit import Emitter

KNAME = "gated_mix__sliding_local_dilated__dense_activation_squared_relu__prompt_kernel"

HP_OFF = 0x0
OP_OFF = 0x700000
WP_OFF = 0xA00000
G_OFF = 0xD00000
FL_OFF = 0xD10000
FL2_OFF = 0xD14000
TS_OFF = 0xD20000
WS_SIZE = 0xE00000

NX = 4
NW = 4
XU = 16384
WBASE = NX * XU
RSCR = WBASE + NW * 16384
DW = 9
GTAB = RSCR
PQ = 488
QB = 32768
OB = 131072 + 2048
PO = 176
LDS_BYTES = 163840

BIG = 0x80000000

sP = 2
sWAVE, sISA, sRB, sCG = 32, 33, 34, 35
X, W, WS, M1, M2 = 36, 40, 44, 48, 52
T0, T1, T2, T3, T4, T5, T6, T7 = 56, 57, 58, 59, 60, 61, 62, 63
sLW = 64
sKX, sKW0, sKW1, sKWH, sKWE = 65, 66, 67, 68, 69
sSLOT, sDELTA, sGD, sIT = 70, 71, 72, 73
sMH, sNH = 74, 75
sT0 = 76
sPITCH = 77
sI3, sJ3 = 78, 79
sACT, sWP, sIDX = 80, 81, 82
sN3, sIW, sIA, sSO, sSO4, sCHK = 64, 65, 66, 67, 68, 69
sODD = 83
sROT = 3
sFLAG = 84
sRH, sCQ, sQ = 100, 101, 85
sTS = 86
sEX = 88
sM = 90
DBG = 96

def srd(e, base, ptr, nbytes):
    e(f"s_mov_b32 s{base}, s{ptr}")
    e(f"s_and_b32 s{base+1}, s{ptr+1}, 0xffff")
    if isinstance(nbytes, int): e(f"s_mov_b32 s{base+2}, {nbytes}")
    else: e(f"s_mov_b32 s{base+2}, {nbytes}")
    e(f"s_mov_b32 s{base+3}, 0x20000")

def csel(e, dst, a, b):
    e(f"s_mov_b32 s{dst}, {b}")
    e(f"s_cselect_b32 s{dst}, {a}, s{dst}")

class VM:
    def __init__(self, e): self.e = e; self.q = []
    def issue(self, tag): self.q.append(tag)
    def wait(self, tag):
        idx = max(i for i, t in enumerate(self.q) if t == tag)
        n = len(self.q) - 1 - idx
        assert n < 64, n
        self.e(f"s_waitcnt vmcnt({n})")
        self.q = self.q[idx + 1:]
    def waitall(self):
        self.e("s_waitcnt vmcnt(0)"); self.q = []

def gen(opts=None):
    o = dict(irot=False, ea=4, eb=4, rot=True, rotb=2, rpj=0, prio=True, steps=False, touch=False, stop=None, ts=False, span=False, span_a=8*9+0, span_b=8*14+0)
    if opts: o.update(opts)
    e = Emitter()
    nstamp = [0]
    def stamp(idx):
        if o['span'] and idx in (8, 0, 1, 2, 4, 5, 6, 7, 3):
            e(f"s_memrealtime s[{sTS}:{sTS+1}]"); e("s_waitcnt lgkmcnt(0)")
            e(f"v_writelane_b32 v0, s{sTS}, {idx}")
            return
        if not o['ts']: return
        e(f"s_memrealtime s[{sTS}:{sTS+1}]")
        e("s_waitcnt lgkmcnt(0)")
        e(f"v_writelane_b32 v0, s{sTS}, {idx}")

    def stepbar(j):
        if o['steps']:
            e(f"s_memtime s[{sTS}:{sTS+1}]"); e("s_waitcnt lgkmcnt(0)"); e(f"v_writelane_b32 v250, s{sTS}, {j}")
        e("s_barrier")
        if o['steps']:
            e(f"s_memtime s[{sTS}:{sTS+1}]"); e("s_waitcnt lgkmcnt(0)"); e(f"v_writelane_b32 v251, s{sTS}, {j}")
    e(f"s_cmp_ge_u32 s2, 256")
    e("s_cbranch_scc1 L_end")
    if o['ts'] or o['span']:
        e(f"s_memrealtime s[{sTS}:{sTS+1}]")
    e("s_load_dwordx16 s[8:23], s[0:1], 0")
    e("s_load_dwordx8 s[24:31], s[0:1], 64")
    e("v_and_b32 v1, 63, v0")
    e("v_lshrrev_b32 v2, 6, v0")
    e("s_nop 0")
    e(f"v_readfirstlane_b32 s{sWAVE}, v2")
    if o['ts'] or o['span']:
        e("s_waitcnt lgkmcnt(0)"); e("v_mov_b32 v0, 0"); e(f"v_writelane_b32 v0, s{sTS}, 8")
    e(f"s_and_b32 s{sRH}, s2, 1"); e(f"s_bfe_u32 s{sCQ}, s2, 0x20001"); e(f"s_lshr_b32 s{sQ}, s2, 3")
    e(f"s_cmp_lt_u32 s{sQ}, 18"); e(f"s_cselect_b32 s{sISA}, 1, 0"); e("s_cbranch_scc0 L_role_b")
    e(f"s_mul_i32 s{sRB}, s{sRH}, 9"); e(f"s_lshr_b32 s{T2}, s{sQ}, 1"); e(f"s_add_u32 s{sRB}, s{sRB}, s{T2}")
    e(f"s_lshl_b32 s{sCG}, s{sCQ}, 1"); e(f"s_and_b32 s{T2}, s{sQ}, 1"); e(f"s_add_u32 s{sCG}, s{sCG}, s{T2}")
    e("s_branch L_role_done")
    e.label("L_role_b")
    e(f"s_mul_i32 s{T2}, s{sCQ}, 14"); e(f"s_add_u32 s{T2}, s{T2}, s{sQ}"); e(f"s_sub_u32 s{T2}, s{T2}, 18")
    e(f"s_lshr_b32 s{sCG}, s{T2}, 3"); e(f"s_and_b32 s{T2}, s{T2}, 7"); e(f"s_lshl_b32 s{sRB}, s{sRH}, 3"); e(f"s_add_u32 s{sRB}, s{sRB}, s{T2}")
    e.label("L_role_done")
    if o['rot']:
        e(f"s_mul_i32 s{T2}, s{sRH}, 9"); e(f"s_lshl_b32 s{T3}, s{sRH}, 3"); e(f"s_cmp_eq_u32 s{sISA}, 1"); e(f"s_cselect_b32 s{T2}, s{T2}, s{T3}")
        e(f"s_sub_u32 s{sROT}, s{sRB}, s{T2}")
        e(f"s_and_b32 s{T2}, s{sCG}, 1"); e(f"s_mul_i32 s{T2}, s{T2}, 5"); e(f"s_add_u32 s{sROT}, s{sROT}, s{T2}")
        e(f"s_cmp_eq_u32 s{sISA}, 1"); e(f"s_cselect_b32 s{T2}, 0, {o['rotb']}"); e(f"s_add_u32 s{sROT}, s{sROT}, s{T2}")
        e(f"s_cmp_ge_u32 s{sROT}, 10"); e(f"s_cselect_b32 s{T2}, 10, 0"); e(f"s_sub_u32 s{sROT}, s{sROT}, s{T2}")
        e(f"s_cmp_ge_u32 s{sROT}, 10"); e(f"s_cselect_b32 s{T2}, 10, 0"); e(f"s_sub_u32 s{sROT}, s{sROT}, s{T2}")
    else:
        e(f"s_mov_b32 s{sROT}, 0")
    e(f"s_and_b32 s{T0}, s2, 7"); e(f"s_lshr_b32 s{T1}, s2, 3")
    e(f"s_lshl_b32 s{sI3}, s{T0}, 2"); e(f"s_lshr_b32 s{T2}, s{T1}, 3"); e(f"s_add_u32 s{sI3}, s{sI3}, s{T2}")
    e(f"s_and_b32 s{sJ3}, s{T1}, 7")
    e(f"s_and_b32 s{sODD}, s{sCG}, 1")
    e(f"s_mul_i32 s{sT0}, s{sRB}, 114"); e(f"s_sub_u32 s{sT0}, s{sT0}, 14")
    e(f"s_cmp_eq_u32 s{sISA}, 1")
    csel(e, sPITCH, 3840, 3456)
    e(f"s_lshl_b32 s{T2}, s{sRB}, 3"); e(f"s_add_u32 s{T2}, s{T2}, s{sCG}")
    e(f"s_mul_i32 s{T3}, s{sRB}, 7"); e(f"s_add_u32 s{T3}, s{T3}, s{sCG}"); e(f"s_add_u32 s{T3}, s{T3}, 144")
    e(f"s_cmp_eq_u32 s{sISA}, 1")
    e(f"s_cselect_b32 s{sFLAG}, s{T2}, s{T3}")
    e("s_waitcnt lgkmcnt(0)")
    stamp(0)
    srd(e, X, 8, 2048*1280)
    e(f"s_cmp_eq_u32 s{sISA}, 1")
    e(f"s_cselect_b32 s{W}, s10, s16"); e(f"s_cselect_b32 s{T0}, s11, s17")
    csel(e, W+2, 640*3840, 640*3456)
    e(f"s_and_b32 s{W+1}, s{T0}, 0xffff"); e(f"s_mov_b32 s{W+3}, 0x20000")
    srd(e, WS, 30, WS_SIZE)
    srd(e, DBG, 28, 256)
    e(f"s_cmp_ge_u32 s{sWAVE}, 4")
    e("s_cbranch_scc1 L_loader")

    A3, AB, WB3 = 8, 88, 136
    PW = 6
    def p3_params():
        la, ld = e.newlabel('p3o'), e.newlabel('p3d')
        e(f"s_cmp_lt_u32 s{sWAVE}, 2"); e(f"s_cbranch_scc1 {la}")
        e(f"s_add_u32 s{T0}, s{sWAVE}, 2"); e(f"s_sub_u32 s{T1}, s{sWAVE}, 4"); e(f"s_cmp_ge_u32 s{sWAVE}, 4"); e(f"s_cselect_b32 s{T0}, s{T1}, s{T0}")
        e(f"s_mul_i32 s{T2}, s{T0}, 9")
        e(f"s_mul_i32 s{sACT}, s{sI3}, 54"); e(f"s_add_u32 s{sACT}, s{sACT}, s{T2}"); e(f"s_lshl_b32 s{sACT}, s{sACT}, 12")
        if HP_OFF: e(f"s_add_u32 s{sACT}, s{sACT}, {HP_OFF}")
        e(f"s_add_u32 s{T3}, s{T2}, 20"); e(f"s_mov_b32 s{sN3}, 9"); e(f"s_mov_b32 s{T6}, {BIG}")
        e(f"s_branch {ld}")
        e.label(la)
        e(f"s_mul_i32 s{T3}, s{sWAVE}, 10")
        e(f"s_mul_i32 s{sACT}, s{sI3}, 20"); e(f"s_add_u32 s{sACT}, s{sACT}, s{T3}"); e(f"s_lshl_b32 s{sACT}, s{sACT}, 12"); e(f"s_add_u32 s{sACT}, s{sACT}, {OP_OFF}")
        e(f"s_mov_b32 s{sN3}, 10"); e(f"s_mov_b32 s{T6}, 0")
        e.label(ld)
        e(f"s_mul_i32 s{sWP}, s{sJ3}, 74"); e(f"s_add_u32 s{sWP}, s{sWP}, s{T3}"); e(f"s_mul_i32 s{sWP}, s{sWP}, 5120"); e(f"s_add_u32 s{sWP}, s{sWP}, {WP_OFF}")
        if o['irot']:
            e(f"s_and_b32 s{sIDX}, s{sI3}, 3"); e(f"s_lshl_b32 s{sIDX}, s{sIDX}, 1"); e(f"s_add_u32 s{sIDX}, s{sIDX}, s{sJ3}")
        else:
            e(f"s_mov_b32 s{sIDX}, s{sJ3}")
        e(f"s_sub_u32 s{T4}, s{sIDX}, s{sN3}"); e(f"s_cmp_ge_u32 s{sIDX}, s{sN3}"); e(f"s_cselect_b32 s{sIDX}, s{T4}, s{sIDX}")
        e("v_lshlrev_b32 v4, 4, v1"); e(f"v_or_b32 v5, s{T6}, v4")
        e("v_lshrrev_b32 v6, 1, v1"); e(f"v_add_u32 v6, s{T3}, v6"); e("v_mul_u32_u24 v6, 10, v6")
        e(f"s_mul_i32 s{T4}, s{sJ3}, 5"); e(f"s_lshr_b32 s{T4}, s{T4}, 2"); e("v_and_b32 v7, 1, v1"); e("v_add_u32 v6, v6, v7"); e(f"v_add_u32 v6, s{T4}, v6")
        e("v_mul_u32_u24 v6, 9363, v6"); e("v_lshrrev_b32 v6, 16, v6"); e("v_lshlrev_b32 v6, 6, v6")
        e(f"s_lshl_b32 s{T4}, s{sN3}, 1"); e(f"v_cmp_gt_u32 vcc, s{T4}, v1"); e(f"v_mov_b32 v7, {BIG}"); e("s_nop 0"); e("v_cndmask_b32 v6, v7, v6, vcc")
    def wp_poll_issue(dst):
        e(f"s_mov_b32 s{T0}, {FL2_OFF}"); e(f"buffer_load_dword v{dst}, v6, s[{WS}:{WS+3}], s{T0} offen sc1")
    def wp_poll_check(dst):
        lo, lk = e.newlabel('wpl'), e.newlabel('wpk')
        e(f"s_mov_b32 s{T1}, 0x40000"); e(f"s_lshl_b32 s{T2}, s{sN3}, 1")
        e.label(lo)
        e(f"v_cmp_gt_u32 s[{sEX}:{sEX+1}], s{T2}, v1"); e(f"v_cmp_ne_u32 vcc, 1, v{dst}"); e(f"s_and_b64 vcc, vcc, s[{sEX}:{sEX+1}]")
        e(f"s_cbranch_vccz {lk}")
        wp_poll_issue(dst); e("s_waitcnt vmcnt(0)")
        e(f"s_sub_u32 s{T1}, s{T1}, 1"); e(f"s_cmp_lg_u32 s{T1}, 0"); e(f"s_cbranch_scc1 {lo}")
        e.label(lk)
    def w_load(t, vm_=None):
        b = WB3 + 20 * (t % PW); vo = 5 if t == 9 else 4
        e(f"s_add_u32 s{sIW}, s{sIDX}, {t}"); e(f"s_sub_u32 s{sSO}, s{sIW}, s{sN3}"); e(f"s_cmp_ge_u32 s{sIW}, s{sN3}"); e(f"s_cselect_b32 s{sIW}, s{sSO}, s{sIW}")
        e(f"s_mul_i32 s{sSO}, s{sIW}, 5120"); e(f"s_add_u32 s{sSO}, s{sSO}, s{sWP}"); e(f"s_add_u32 s{sSO4}, s{sSO}, 4096")
        for q in range(5):
            if q < 4: e(f"buffer_load_dwordx4 v[{b+4*q}:{b+4*q+3}], v{vo}, s[{WS}:{WS+3}], s{sSO} offen offset:{q*1024} sc1")
            else: e(f"buffer_load_dwordx4 v[{b+4*q}:{b+4*q+3}], v{vo}, s[{WS}:{WS+3}], s{sSO4} offen sc1")
            if vm_: vm_.issue(f'w{t}')
    def w_pref(t0, t1):
        e("v_lshlrev_b32 v4, 4, v1")
        for t in range(t0, t1): w_load(t)

    vX, vE, vO, vX1 = 2, 3, 4, 5
    ACC = 8
    XB = [136, 152]; WB = [168, 200]
    e(f"s_lshr_b32 s{sMH}, s{sWAVE}, 1"); e(f"s_and_b32 s{sNH}, s{sWAVE}, 1")
    e(f"s_cmp_eq_u32 s2, 0"); e("s_cbranch_scc0 L_noclear")
    e(f"s_cmp_eq_u32 s{sWAVE}, 0"); e("s_cbranch_scc0 L_noclear")
    e("v_lshlrev_b32 v8, 6, v1"); e("v_mov_b32 v9, 0")
    for k in range(6):
        e(f"s_mov_b32 s{T0}, {FL_OFF + k*4096}")
        e(f"buffer_store_dword v9, v8, s[{WS}:{WS+3}], s{T0} offen sc1")
    e("s_waitcnt vmcnt(0)")
    e("v_mov_b32 v9, 1"); e("v_mov_b32 v8, 0")
    e(f"s_mov_b64 s[{sEX}:{sEX+1}], exec"); e("s_mov_b64 exec, 1")
    e(f"buffer_store_dword v9, v8, s[{DBG}:{DBG+3}], 0 offen sc1")
    e(f"s_mov_b64 exec, s[{sEX}:{sEX+1}]")
    e.label("L_noclear")
    e(f"s_mov_b32 s{M1}, s18"); e(f"s_and_b32 s{M1+1}, s19, 0xffff")
    e(f"s_cmp_eq_u32 s{sISA}, 1"); e(f"s_cselect_b32 s{M1+2}, 0, 3456"); e(f"s_mov_b32 s{M1+3}, 0x20000")
    e("v_lshrrev_b32 v7, 4, v1")
    e("v_lshlrev_b32 v232, 3, v7")
    e(f"s_lshl_b32 s{T0}, s{sCG}, 9"); e(f"s_lshl_b32 s{T1}, s{sNH}, 8"); e(f"s_add_u32 s{T0}, s{T0}, s{T1}")
    e(f"v_add_u32 v232, s{T0}, v232")
    for nt in range(8):
        e(f"buffer_load_dwordx2 v[{XB[0]+2*nt}:{XB[0]+2*nt+1}], v232, s[{M1}:{M1+3}], 0 offen offset:{nt*32}")
    e("v_and_b32 v233, 15, v1")
    e("v_bfe_u32 v234, v233, 1, 3")
    e("v_xor_b32 v234, v7, v234")
    e("v_lshlrev_b32 v234, 4, v234")
    e(f"v_lshl_add_u32 v{vX}, v233, 7, v234")
    e(f"s_lshl_b32 s{T0}, s{sMH}, 13")
    e(f"v_add_u32 v{vX}, s{T0}, v{vX}")
    e(f"v_xor_b32 v{vX1}, 64, v{vX}")
    e("v_lshrrev_b32 v233, 2, v1"); e("v_and_b32 v233, 3, v233")
    e("v_lshl_add_u32 v233, v7, 3, v233")
    e("v_and_b32 v234, 3, v1"); e("v_lshlrev_b32 v234, 3, v234")
    e("v_lshl_add_u32 v235, v233, 6, v234")
    e(f"s_lshl_b32 s{T0}, s{sNH}, 13"); e(f"s_add_u32 s{T0}, s{T0}, {WBASE}")
    e(f"v_add_u32 v235, s{T0}, v235")
    e("v_and_b32 v236, 1, v7"); e("v_lshlrev_b32 v236, 5, v236")
    e(f"v_add_u32 v{vE}, v235, v236")
    e("v_xor_b32 v236, 32, v236")
    e(f"v_add_u32 v{vO}, v235, v236")
    e("s_waitcnt vmcnt(0)")
    for nt in range(8):
        a = ACC + nt * 16
        s0 = XB[0] + 2 * nt
        e(f"v_lshlrev_b32 v{a}, 16, v{s0}"); e(f"v_and_b32 v{a+1}, 0xffff0000, v{s0}")
        e(f"v_lshlrev_b32 v{a+2}, 16, v{s0+1}"); e(f"v_and_b32 v{a+3}, 0xffff0000, v{s0+1}")
        for mt in range(1, 4):
            for r in range(4): e(f"v_mov_b32 v{a+4*mt+r}, v{a+r}")
    def reads(st):
        buf = st & 1
        L = []
        for mt in range(4): L.append(f"ds_read_b128 v[{XB[buf]+4*mt}:{XB[buf]+4*mt+3}], v{vX if buf == 0 else vX1} offset:{((st >> 1) & 1) * XU + mt*2048}")
        for nt in range(8):
            for h in range(2):
                d = WB[buf] + 4 * nt + 2 * h
                L.append(f"ds_read_b64_tr_b16 v[{d}:{d+1}], v{vE if nt % 2 == 0 else vO} offset:{(st & 3) * 16384 + (nt>>1)*2048 + h*256}")
        return L
    if o['touch']: e("s_barrier")
    e("s_barrier")
    stamp(1)
    for r in reads(0): e(r)
    e("s_waitcnt lgkmcnt(0)")
    e("s_barrier")
    e(f"s_mov_b32 s{sIT}, 4")
    if o['prio']: e("s_setprio 1")
    def step(q, rd, ctl, bar):
        half = q & 1
        fill = []
        if q == 3 and rd: fill += [f"v_xor_b32 v{vX}, 0x8000, v{vX}", f"v_xor_b32 v{vX1}, 0x8000, v{vX1}"]
        if rd: fill += reads(q + 1)
        for m in range(32):
            nt, mt = m // 4, m % 4
            a = ACC + (nt * 4 + mt) * 4
            e(f"v_mfma_f32_16x16x32_bf16 v[{a}:{a+3}], v[{WB[half]+4*nt}:{WB[half]+4*nt+3}], v[{XB[half]+4*mt}:{XB[half]+4*mt+3}], v[{a}:{a+3}]")
            if fill: e(fill.pop(0))
            if ctl and m == 28: e(f"s_sub_u32 s{sIT}, s{sIT}, 1")
            if ctl and m == 29: e(f"s_cmp_lg_u32 s{sIT}, 0")
        assert not fill
        if rd: e("s_waitcnt lgkmcnt(0)")
        if bar: e("s_barrier")
    e(".p2align 3")
    e.label("L_main")
    for q in range(4): step(q, True, q == 3, True)
    e("s_cbranch_scc1 L_main")
    step(0, True, False, True)
    step(1, True, False, True)
    step(2, True, False, False)
    step(3, False, False, False)
    if o['prio']: e("s_setprio 0")
    stamp(2)
    p3_params()
    e("v_mov_b32 v7, 0")
    e(f"buffer_load_dword v3, v7, s[{DBG}:{DBG+3}], 0 offen sc1")
    wp_poll_issue(2)
    e(f"s_cmp_eq_u32 s{sISA}, 1"); e("s_cbranch_scc1 L_epiA")

    e(f"s_lshl_b32 s{T0}, s{sRB}, 1"); e(f"s_add_u32 s{T0}, s{T0}, s{sMH}"); e(f"s_mul_i32 s{T0}, s{T0}, 54")
    e(f"s_lshl_b32 s{T1}, s{sCG}, 3"); e(f"s_lshl_b32 s{T2}, s{sNH}, 2"); e(f"s_add_u32 s{T1}, s{T1}, s{T2}")
    e(f"s_add_u32 s{T0}, s{T0}, s{T1}"); e(f"s_lshl_b32 s{T0}, s{T0}, 12")
    if HP_OFF: e(f"s_add_u32 s{T0}, s{T0}, {HP_OFF}")
    e(f"s_mov_b32 s{T7}, s{T1}")
    for up in range(4):
        if up == 2:
            e(f"s_cmp_ge_u32 s{T7}, 52"); e("s_cbranch_scc1 L_epiB_short")
        for mt in range(4):
            d = 236 + 4 * ((up * 4 + mt) % 4)
            for tt in range(2):
                a = ACC + ((2 * up + tt) * 4 + mt) * 4
                for r in range(4): e(f"v_max_f32 v{a+r}, 0, v{a+r}")
                e(f"v_pk_mul_f32 v[{a}:{a+1}], v[{a}:{a+1}], v[{a}:{a+1}]")
                e(f"v_pk_mul_f32 v[{a+2}:{a+3}], v[{a+2}:{a+3}], v[{a+2}:{a+3}]")
                e(f"v_cvt_pk_bf16_f32 v{d+2*tt}, v{a}, v{a+1}")
                e(f"v_cvt_pk_bf16_f32 v{d+2*tt+1}, v{a+2}, v{a+3}")
            e(f"buffer_store_dwordx4 v[{d}:{d+3}], v4, s[{WS}:{WS+3}], s{T0} offen offset:{mt*1024} sc1")
        e(f"s_add_u32 s{T0}, s{T0}, 4096")
    e("s_waitcnt vmcnt(16)")
    e("s_branch L_epiB_done")
    e.label("L_epiB_short")
    e("s_waitcnt vmcnt(8)")
    e.label("L_epiB_done")
    stamp(9)
    e(f"v_readfirstlane_b32 s{sCHK}, v3")
    wp_poll_check(2)
    e("s_branch L_cw_pref")

    e.label("L_epiA")
    e("v_and_b32 v233, 15, v1"); e("v_lshrrev_b32 v7, 4, v1")
    e(f"s_lshl_b32 s{T0}, s{sMH}, 6")
    e(f"v_add_u32 v233, s{T0}, v233")
    e(f"v_mul_u32_u24 v234, {PQ}, v233")
    e("v_lshl_add_u32 v234, v7, 3, v234")
    e(f"v_add_u32 v234, {QB}, v234")
    e(f"s_lshl_b32 s{T0}, s{sODD}, 5"); e(f"v_add_u32 v235, s{T0}, v234")
    e(f"s_lshl_b32 s{T0}, s{sODD}, 7"); e(f"v_subrev_u32 v236, s{T0}, v234")
    colE = [0, 32, 64, 96, 160, 192, 224, 256, 320, 352, 384, 416, 128, 288, 448]
    e(f"s_cmp_eq_u32 s{sNH}, 1"); e("s_cbranch_scc1 L_epiA_n1")
    def qkv_write(nh):
        for nt in range(8):
            tile = 8 * nh + nt
            if tile == 15: continue
            for mt in range(4):
                a = ACC + (nt * 4 + mt) * 4
                d = 238 + 2 * ((nt * 4 + mt) % 8)
                e(f"v_cvt_pk_bf16_f32 v{d}, v{a}, v{a+1}"); e(f"v_cvt_pk_bf16_f32 v{d+1}, v{a+2}, v{a+3}")
                e(f"ds_write_b64 v{235 if tile < 12 else 236}, v[{d}:{d+1}] offset:{colE[tile] + mt*16*PQ}")
    qkv_write(0)
    e("s_waitcnt vmcnt(0)")
    e(f"v_readfirstlane_b32 s{sCHK}, v3")
    wp_poll_check(2)
    e("s_branch L_epiA_w")
    e.label("L_epiA_n1")
    qkv_write(1)
    e("s_waitcnt vmcnt(0)")
    e(f"v_readfirstlane_b32 s{sCHK}, v3")
    wp_poll_check(2)
    e(f"s_cmp_eq_u32 s{sCG}, 0"); e("s_cbranch_scc0 L_epiA_w")
    for mt in range(4):
        a = ACC + (7 * 4 + mt) * 4
        e(f"v_cvt_pk_bf16_f32 v238, v{a}, v{a}"); e("v_lshlrev_b32 v238, 16, v238")
        e("v_mul_f32 v238, 0xbfb8aa3b, v238")
        e("v_exp_f32 v238, v238"); e("v_add_f32 v238, 1.0, v238"); e("v_rcp_f32 v238, v238")
        e("v_cvt_pk_bf16_f32 v238, v238, v238"); e(f"v_lshlrev_b32 v{240+mt}, 16, v238")
    e("v_and_b32 v233, 15, v1")
    for mt in range(4):
        e(f"v_add_u32 v238, {16*mt}, v233")
        e("v_lshlrev_b32 v239, 1, v238"); e(f"s_add_u32 s{T0}, s{sT0}, s{sMH}"); e(f"v_add_u32 v239, s{T0}, v239")
        e("v_lshlrev_b32 v244, 2, v239")
        e(f"v_cmp_le_u32 s[{sM}:{sM+1}], 7, v238"); e(f"v_cmp_gt_u32 s[{sM+2}:{sM+3}], 16, v1"); e(f"v_cmp_gt_u32 vcc, 2048, v239")
        e(f"s_and_b64 s[{sM}:{sM+1}], s[{sM}:{sM+1}], s[{sM+2}:{sM+3}]"); e(f"s_and_b64 vcc, vcc, s[{sM}:{sM+1}]")
        e(f"v_mov_b32 v245, {BIG}"); e("s_nop 1"); e("v_cndmask_b32 v244, v245, v244, vcc")
        e(f"s_mov_b32 s{T1}, {G_OFF}")
        e(f"buffer_store_dword v{240+mt}, v244, s[{WS}:{WS+3}], s{T1} offen sc1")
    e.label("L_epiA_w")
    e("s_waitcnt lgkmcnt(0)")
    e.label("L_attn")
    e("s_barrier")
    stamp(3)
    e(f"s_and_b32 s{T0}, s{sWAVE}, 3"); e(f"s_lshr_b32 s{T1}, s{sWAVE}, 2")
    e(f"s_mul_i32 s{T2}, s{T1}, {64*PQ}"); e(f"s_mul_i32 s{T3}, s{T0}, 40"); e(f"s_add_u32 s{T2}, s{T2}, s{T3}"); e(f"s_add_u32 s{T2}, s{T2}, {QB}")
    e(f"v_mul_u32_u24 v2, {PQ}, v1"); e(f"v_add_u32 v2, s{T2}, v2")
    for kb in range(3):
        e(f"v_subrev_u32 v9, {8-4*kb}, v1"); e("v_max_i32 v9, 0, v9")
        e(f"v_mul_u32_u24 v9, {PQ}, v9"); e(f"v_add_u32 v{3+kb}, s{T2}, v9")
    e("v_and_b32 v9, 48, v1"); e("v_and_b32 v10, 3, v1"); e("v_lshl_add_u32 v9, v10, 2, v9")
    e("v_bfe_u32 v10, v1, 2, 2"); e("v_add_u32 v9, v9, v10")
    for kb in range(3):
        e(f"v_subrev_u32 v10, {8-4*kb}, v9"); e("v_max_i32 v10, 0, v10")
        e(f"v_mul_u32_u24 v10, {PQ}, v10"); e(f"v_add_u32 v{6+kb}, s{T2}, v10")
    Q = 16; K = 28; V = 60; S = 92; O = 104
    for s_ in range(5): e(f"ds_read_b64 v[{Q+2*s_}:{Q+2*s_+1}], v2 offset:{8*s_}")
    for kb in range(3):
        for s_ in range(5): e(f"ds_read_b64 v[{K+10*kb+2*s_}:{K+10*kb+2*s_+1}], v{3+kb} offset:{160+8*s_}")
    for kb in range(3):
        for dg in range(5): e(f"ds_read_b64_tr_b16 v[{V+10*kb+2*dg}:{V+10*kb+2*dg+1}], v{6+kb} offset:{320+8*dg}")
    for r in range(12): e(f"v_mov_b32 v{S+r}, 0")
    for r in range(20): e(f"v_mov_b32 v{O+r}, 0")
    e("v_and_b32 v9, 3, v1")
    e(f"v_cmp_eq_u32 s[{sM}:{sM+1}], 0, v9"); e(f"v_cmp_ge_u32 s[{sM+2}:{sM+3}], 1, v9"); e(f"v_cmp_ge_u32 s[{sM+4}:{sM+5}], 2, v9")
    e("s_waitcnt lgkmcnt(15)")
    for s_ in range(5):
        for kb in range(3):
            e(f"v_mfma_f32_4x4x4_16b_bf16 v[{S+4*kb}:{S+4*kb+3}], v[{K+10*kb+2*s_}:{K+10*kb+2*s_+1}], v[{Q+2*s_}:{Q+2*s_+1}], v[{S+4*kb}:{S+4*kb+3}]")
    Y = 124
    e(f"v_cndmask_b32 v{Y}, v{S+9}, v{S+1}, s[{sM}:{sM+1}]")
    e(f"v_cndmask_b32 v{Y+1}, v{S+10}, v{S+2}, s[{sM+2}:{sM+3}]")
    e(f"v_cndmask_b32 v{Y+2}, v{S+11}, v{S+3}, s[{sM+4}:{sM+5}]")
    ys = [Y, Y+1, Y+2, S+4, S+5, S+6, S+7, S+8]
    e(f"s_cmp_eq_u32 s{sRB}, 0"); e("s_cbranch_scc0 L_nomask")
    e("v_and_b32 v9, 60, v1"); e("v_sub_u32 v9, 15, v9")
    e(f"v_mov_b32 v10, 0xf149f2ca")
    for n, reg in ((4, S+4), (5, S+5), (6, S+6), (7, S+7), (8, S+8)):
        e(f"v_cmp_lt_i32 vcc, {n}, v9"); e(f"v_cndmask_b32 v{reg}, v{reg}, v10, vcc")
    for n, reg, m in ((1, Y, sM), (2, Y+1, sM+2), (3, Y+2, sM+4)):
        e(f"v_mov_b32 v11, {n+8}"); e(f"v_cndmask_b32 v11, v11, {n}, s[{m}:{m+1}]")
        e(f"v_cmp_lt_i32 vcc, v11, v9"); e(f"v_cndmask_b32 v{reg}, v{reg}, v10, vcc")
    e.label("L_nomask")
    e(f"v_max3_f32 v9, v{ys[0]}, v{ys[1]}, v{ys[2]}"); e(f"v_max3_f32 v10, v{ys[3]}, v{ys[4]}, v{ys[5]}")
    e(f"v_max3_f32 v9, v9, v{ys[6]}, v{ys[7]}"); e("v_max_f32 v9, v9, v10")
    CS = 0.22360679774997896 * 1.4426950408889634
    import struct
    csb = struct.unpack('<I', struct.pack('<f', CS))[0]
    e(f"s_mov_b32 s{T4}, {csb}")
    e(f"v_mul_f32 v9, s{T4}, v9")
    for y in ys: e(f"v_fma_f32 v{y}, v{y}, s{T4}, -v9")
    for y in ys: e(f"v_exp_f32 v{y}, v{y}")
    e(f"v_add_f32 v9, v{ys[0]}, v{ys[1]}"); e(f"v_add_f32 v10, v{ys[2]}, v{ys[3]}")
    e(f"v_add_f32 v11, v{ys[4]}, v{ys[5]}"); e(f"v_add_f32 v12, v{ys[6]}, v{ys[7]}")
    e("v_add_f32 v9, v9, v10"); e("v_add_f32 v11, v11, v12"); e("v_add_f32 v9, v9, v11")
    e("v_rcp_f32 v9, v9")
    for y in ys: e(f"v_mul_f32 v{y}, v{y}, v9")
    P = 128
    e(f"v_cndmask_b32 v{S+1}, 0, v{Y}, s[{sM}:{sM+1}]"); e(f"v_cndmask_b32 v{S+9}, v{Y}, 0, s[{sM}:{sM+1}]")
    e(f"v_cndmask_b32 v{S+2}, 0, v{Y+1}, s[{sM+2}:{sM+3}]"); e(f"v_cndmask_b32 v{S+10}, v{Y+1}, 0, s[{sM+2}:{sM+3}]")
    e(f"v_cndmask_b32 v{S+3}, 0, v{Y+2}, s[{sM+4}:{sM+5}]"); e(f"v_cndmask_b32 v{S+11}, v{Y+2}, 0, s[{sM+4}:{sM+5}]")
    e(f"v_mov_b32 v{S}, 0")
    for kb in range(3):
        e(f"v_cvt_pk_bf16_f32 v{P+2*kb}, v{S+4*kb}, v{S+4*kb+1}"); e(f"v_cvt_pk_bf16_f32 v{P+2*kb+1}, v{S+4*kb+2}, v{S+4*kb+3}")
    e("s_waitcnt lgkmcnt(0)")
    for kb in range(3):
        for dg in range(5):
            e(f"v_mfma_f32_4x4x4_16b_bf16 v[{O+4*dg}:{O+4*dg+3}], v[{V+10*kb+2*dg}:{V+10*kb+2*dg+1}], v[{P+2*kb}:{P+2*kb+1}], v[{O+4*dg}:{O+4*dg+3}]")
    e(f"s_mul_i32 s{T2}, s{T1}, {64*PO}"); e(f"s_mul_i32 s{T3}, s{T0}, 40"); e(f"s_add_u32 s{T2}, s{T2}, s{T3}"); e(f"s_add_u32 s{T2}, s{T2}, {OB}")
    e(f"v_mul_u32_u24 v2, {PO}, v1"); e(f"v_add_u32 v2, s{T2}, v2")
    for dg in range(5):
        e(f"v_cvt_pk_bf16_f32 v{Q+2*dg}, v{O+4*dg}, v{O+4*dg+1}"); e(f"v_cvt_pk_bf16_f32 v{Q+2*dg+1}, v{O+4*dg+2}, v{O+4*dg+3}")
        e(f"ds_write_b64 v2, v[{Q+2*dg}:{Q+2*dg+1}] offset:{8*dg}")
    e("s_waitcnt lgkmcnt(0)")
    e("s_barrier")
    for r in range(3):
        if r == 2:
            e(f"s_cmp_ge_u32 s{sWAVE}, 4"); e("s_cbranch_scc1 L_ostore_done")
        e(f"s_add_u32 s{T0}, s{sWAVE}, {8*r}"); e(f"s_lshr_b32 s{T1}, s{T0}, 1"); e(f"s_and_b32 s{T0}, s{T0}, 1")
        e(f"s_lshl_b32 s{T2}, s{T0}, 6")
        e(f"v_add_u32 v2, s{T2}, v1")
        e("v_add_u32 v3, 14, v2")
        e("v_and_b32 v4, 1, v3"); e("v_lshrrev_b32 v5, 1, v3"); e("v_lshl_add_u32 v4, v4, 6, v5")
        e("v_min_u32 v4, 127, v4")
        e(f"v_mul_u32_u24 v4, {PO}, v4"); e(f"s_lshl_b32 s{T3}, s{T1}, 4"); e(f"s_add_u32 s{T3}, s{T3}, {OB}")
        e(f"v_add_u32 v4, s{T3}, v4")
        e(f"ds_read_b128 v[8:11], v4")
        e(f"s_add_u32 s{T3}, s{sT0}, 14"); e(f"v_add_u32 v5, s{T3}, v2")
        e(f"s_mul_i32 s{T4}, s{sCG}, 10"); e(f"s_add_u32 s{T4}, s{T4}, s{T1}")
        e(f"s_lshr_b32 s{T5}, s{T4}, 2"); e(f"s_and_b32 s{T4}, s{T4}, 3")
        e(f"s_lshl_b32 s{T5}, s{T5}, 12"); e(f"s_lshl_b32 s{T4}, s{T4}, 8"); e(f"s_add_u32 s{T5}, s{T5}, s{T4}"); e(f"s_add_u32 s{T5}, s{T5}, {OP_OFF}")
        e("v_lshrrev_b32 v6, 6, v5"); e(f"v_mul_u32_u24 v6, {20*4096}, v6")
        e("v_bfe_u32 v7, v5, 4, 2"); e("v_lshl_add_u32 v6, v7, 10, v6")
        e("v_and_b32 v7, 15, v5"); e("v_lshl_add_u32 v6, v7, 4, v6")
        e(f"v_cmp_gt_u32 vcc, 114, v2"); e(f"s_mov_b64 s[{sM}:{sM+1}], vcc"); e(f"v_cmp_gt_u32 vcc, 2048, v5"); e(f"s_and_b64 vcc, vcc, s[{sM}:{sM+1}]")
        e(f"v_mov_b32 v7, {BIG}"); e("s_nop 1"); e("v_cndmask_b32 v6, v7, v6, vcc")
        e("s_waitcnt lgkmcnt(0)")
        e(f"buffer_store_dwordx4 v[8:11], v6, s[{WS}:{WS+3}], s{T5} offen sc1")
    e.label("L_ostore_done")
    e("s_waitcnt vmcnt(0)")
    e("s_branch L_bar3")
    e.label("L_cw_pref")
    e(f"s_waitcnt vmcnt(0)")
    stamp(13)
    e.label("L_bar3")
    e("s_barrier")
    stamp(4)
    e(f"s_cmp_eq_u32 s{sWAVE}, 0"); e("s_cbranch_scc0 L_flag_done")
    e(f"s_cmp_eq_u32 s{sCHK}, 1"); e("s_cbranch_scc1 L_chk_ok")
    e(f"s_mov_b32 s{T0}, 0x40000")
    e.label("L_chk")
    e("v_mov_b32 v2, 0")
    e(f"buffer_load_dword v3, v2, s[{DBG}:{DBG+3}], 0 offen sc1"); e("s_waitcnt vmcnt(0)")
    e(f"v_cmp_eq_u32 vcc, 1, v3"); e("s_cbranch_vccnz L_chk_ok")
    e(f"s_sub_u32 s{T0}, s{T0}, 1"); e(f"s_cmp_lg_u32 s{T0}, 0"); e("s_cbranch_scc1 L_chk")
    e.label("L_chk_ok")
    e(f"s_lshl_b32 s{T0}, s{sFLAG}, 6"); e(f"s_add_u32 s{T0}, s{T0}, {FL_OFF}")
    e("v_mov_b32 v2, 0"); e("v_mov_b32 v3, 1")
    e(f"s_mov_b64 s[{sEX}:{sEX+1}], exec"); e("s_mov_b64 exec, 1")
    e(f"buffer_store_dword v3, v2, s[{WS}:{WS+3}], s{T0} offen sc1")
    e(f"s_mov_b64 exec, s[{sEX}:{sEX+1}]")
    e.label("L_flag_done")
    if o['stop'] == 'p1':
        e("s_branch L_fin")
    else:
        e("s_branch L_phase3")

    e.label("L_loader")
    e(f"s_cmp_eq_u32 s{sWAVE}, 4"); e("s_cbranch_scc1 L_ldx")
    e(f"s_cmp_eq_u32 s{sWAVE}, 7"); e("s_cbranch_scc1 L_helper")
    e(f"s_cmp_eq_u32 s{sWAVE}, 5"); e("s_cbranch_scc1 L_ldw0")
    e("s_branch L_ldw1")

    def loader_tail():
        stamp(2)
        e("s_waitcnt vmcnt(0)")
        wp_poll_check(2)
        stamp(9)
        EA, EB = o['ea'], o['eb']
        lb_ = e.newlabel('eb')
        w_pref(0, min(EA, EB))
        if EA != EB:
            e(f"s_cmp_eq_u32 s{sISA}, {1 if EA > EB else 0}"); e(f"s_cbranch_scc0 {lb_}")
            w_pref(min(EA, EB), max(EA, EB))
            e.label(lb_)
        stamp(10)
        if o['steps']:
            e(f"s_lshl_b32 s{T0}, s2, 3"); e(f"s_add_u32 s{T0}, s{T0}, s{sWAVE}"); e(f"s_lshl_b32 s{T0}, s{T0}, 8"); e(f"s_add_u32 s{T0}, s{T0}, {TS_OFF + 0x40000}")
            e("v_lshlrev_b32 v249, 2, v1"); e("s_mov_b64 exec, 0xffffffff")
            e(f"buffer_store_dword v250, v249, s[{WS}:{WS+3}], s{T0} offen")
            e(f"buffer_store_dword v251, v249, s[{WS}:{WS+3}], s{T0} offen offset:128")
            e("s_mov_b64 exec, -1")
        e(f"s_cmp_eq_u32 s{sISA}, 1"); e("s_cbranch_scc1 L_attn")
        e("s_branch L_bar3")
    def loader_early(j, vm):
        if j == 16:
            p3_params(); wp_poll_issue(2); vm.issue('wpp')

    e.label("L_ldx")
    vm = VM(e)
    VX = 8
    e("v_lshrrev_b32 v2, 3, v1")
    e("v_and_b32 v3, 7, v1"); e("v_lshrrev_b32 v4, 1, v2"); e("v_xor_b32 v3, v3, v4"); e("v_lshlrev_b32 v3, 4, v3")
    e("v_xor_b32 v4, 64, v3")
    e(f"v_lshlrev_b32 v2, s{sISA}, v2")
    e(f"s_lshl_b32 s{T0}, s{sRB}, 7"); e(f"s_cmp_eq_u32 s{sISA}, 1"); e(f"s_cselect_b32 s{T0}, s{sT0}, s{T0}")
    e(f"s_lshl_b32 s{T1}, 8, s{sISA}")
    e(f"s_movk_i32 s{T3}, 2047"); e(f"s_movk_i32 s{T4}, 1280"); e(f"s_lshl_b32 s{sKX}, s{sROT}, 7")
    def xadv():
        e(f"s_add_u32 s{sKX}, s{sKX}, 128"); e(f"s_cmp_eq_u32 s{sKX}, s{T4}"); e(f"s_cselect_b32 s{sKX}, 0, s{sKX}")
    def xissue(u, n):
        e(f"s_mov_b32 m0, {(u % NX) * XU + n * 1024}")
        e(f"buffer_load_dwordx4 v{VX+n}, s[{X}:{X+3}], s{sKX} offen lds"); vm.issue(f'x{u}')
    for n in range(16):
        if n == 8:
            e(f"s_add_u32 s{T2}, s{sT0}, 1"); e(f"s_cmp_eq_u32 s{sISA}, 1"); e(f"s_cselect_b32 s{T0}, s{T2}, s{T0}")
        e(f"v_add_u32 v5, s{T0}, v2"); e(f"s_add_u32 s{T0}, s{T0}, s{T1}")
        e(f"v_med3_i32 v5, v5, 0, s{T3}")
        e(f"v_mad_u32_u24 v{VX+n}, v5, s{T4}, v{3 + (n & 1)}")
        if not o['touch']: xissue(0, n)
    if o['touch']:
        e("s_barrier")
        for n in range(16): xissue(0, n)
    stamp(11)
    xadv()
    for n in range(16): xissue(1, n)
    stamp(1)
    vm.wait('x0'); stamp(14)
    e("s_barrier")
    xadv()
    for n in range(16): xissue(2, n)
    e("s_barrier")
    for j in range(18):
        u = (j + 6) // 2; hf = (j + 6) % 2
        if u < 10:
            if hf == 0: xadv()
            for n in range(8 * hf, 8 * hf + 8): xissue(u, n)
        if (j + 2) % 2 == 0 and (j + 2) // 2 < 10: vm.wait(f'x{(j+2)//2}')
        loader_early(j, vm)
        stepbar(j)
    loader_tail()

    for a_ in range(2):
        e.label(f"L_ldw{a_}")
        vm = VM(e)
        VW = 8
        e("v_lshrrev_b32 v2, 2, v1"); e(f"v_mul_lo_u32 v2, v2, s{sPITCH}")
        e("v_and_b32 v3, 1, v1"); e("v_lshl_add_u32 v2, v3, 4, v2")
        e("v_lshrrev_b32 v3, 1, v1"); e("v_lshrrev_b32 v4, 5, v1"); e("v_xor_b32 v3, v3, v4"); e("v_and_b32 v3, 1, v3")
        e("v_cmp_eq_u32 vcc, 1, v3")
        e(f"s_mul_i32 s{T4}, s{sCG}, 160"); e(f"s_lshl_b32 s{T5}, s{sODD}, 5"); e(f"s_add_u32 s{T5}, s{T5}, s{T4}")
        e(f"s_lshl_b32 s{T6}, s{sCG}, 9")
        e(f"s_lshl_b32 s{T7}, s{sPITCH}, 5"); e(f"s_mul_i32 s{sKW0}, s{T7}, s{sROT}"); e(f"s_lshl_b32 s{sKW0}, s{sKW0}, 1")
        e(f"s_lshl_b32 s{sKWH}, s{sPITCH}, 4"); e(f"s_add_u32 s{sKW1}, s{sKW0}, s{sKWH}"); e(f"s_mul_i32 s{sKWE}, s{T7}, 20")
        for pp in range(4):
            P = 4 * a_ + pp
            e(f"s_add_u32 s{T0}, s{T6}, {64*P}"); e(f"s_add_u32 s{T1}, s{T0}, 32")
            if P >= 6:
                e(f"s_cmp_ge_u32 s{T0}, 3456"); e(f"s_cselect_b32 s{T0}, {BIG}, s{T0}"); e(f"s_cselect_b32 s{T1}, {BIG}, s{T1}")
            if P < 6:
                e(f"s_add_u32 s{T2}, s{T5}, {1280*(P>>1) + 64*(P&1)}"); e(f"s_add_u32 s{T3}, s{T2}, 32")
            else:
                e(f"s_cmp_eq_u32 s{sODD}, 1"); e(f"s_cselect_b32 s{T2}, 0, 128") if False else None
                e(f"s_lshl_b32 s{T2}, s{sODD}, 7"); e(f"s_sub_u32 s{T2}, s{T4}, s{T2}"); e(f"s_add_u32 s{T2}, s{T2}, {128 + (2560 if P == 7 else 0)}")
                if P == 6: e(f"s_add_u32 s{T3}, s{T2}, 1280")
                else: e(f"s_mov_b32 s{T3}, {BIG}")
            e(f"s_cmp_eq_u32 s{sISA}, 1"); e(f"s_cselect_b32 s{T0}, s{T2}, s{T0}"); e(f"s_cselect_b32 s{T1}, s{T3}, s{T1}")
            e(f"v_mov_b32 v4, s{T0}"); e(f"v_mov_b32 v5, s{T1}")
            e(f"v_cndmask_b32 v4, v4, v5, vcc"); e(f"v_add_u32 v{VW+pp}, v4, v2")
        def wstage(j):
            for hf in range(2):
                for pp in range(4):
                    gatehalf = (a_ == 1 and pp == 3)
                    if gatehalf: e(f"s_mov_b64 exec, s[{sM}:{sM+1}]")
                    e(f"s_mov_b32 m0, {WBASE + (j % NW) * 16384 + (4*a_ + pp) * 2048 + hf * 1024}")
                    e(f"buffer_load_dwordx4 v{VW+pp}, s[{W}:{W+3}], s{sKW1 if hf else sKW0} offen lds"); vm.issue(f'st{j}')
                    if gatehalf: e("s_mov_b64 exec, -1")
            e(f"s_add_u32 s{sKW0}, s{sKW0}, s{T7}"); e(f"s_cmp_eq_u32 s{sKW0}, s{sKWE}"); e(f"s_cselect_b32 s{sKW0}, 0, s{sKW0}")
            e(f"s_add_u32 s{sKW1}, s{sKW0}, s{sKWH}")
        if a_ == 1:
            e(f"s_mov_b64 s[{sM}:{sM+1}], -1")
            e(f"s_cmp_eq_u32 s{sISA}, 1"); lab = e.newlabel('ng'); e(f"s_cbranch_scc0 {lab}")
            e(f"s_not_b64 s[{sM}:{sM+1}], vcc")
            e.label(lab)
        if o['touch']: e("s_barrier")
        wstage(0)
        if a_ == 0: stamp(11)
        wstage(1)
        if a_ == 0: stamp(1)
        vm.wait('st0')
        if a_ == 0: stamp(14)
        e("s_barrier")
        wstage(2); wstage(3)
        vm.wait('st1')
        e("s_barrier")
        for j in range(18):
            if j + 4 < 20: wstage(j + 4)
            if j + 2 < 20: vm.wait(f'st{j+2}')
            loader_early(j, vm)
            stepbar(j)
        loader_tail()

    e.label("L_helper")
    vm = VM(e)
    srd(e, M1, 24, 1280)
    e("v_lshlrev_b32 v2, 4, v1")
    for m in range(2):
        e(f"s_mov_b32 m0, {GTAB + 1024*m}"); e(f"s_movk_i32 s{T0}, {1024*m}")
        e(f"buffer_load_dwordx4 v2, s[{M1}:{M1+3}], s{T0} offen lds"); vm.issue('gate')
    TA, TB = 88, 92
    srd(e, TA, 10, 640*3840); srd(e, TB, 16, 640*3456)
    e(f"s_mul_i32 s{T0}, s{sRH}, 1012"); e(f"s_mul_i32 s{T1}, s{sQ}, 33"); e(f"s_add_u32 s{T0}, s{T0}, s{T1}")
    e(f"v_add_u32 v3, s{T0}, v1"); e("v_mul_u32_u24 v4, 1280, v3"); e(f"v_mov_b32 v5, {BIG}")
    e("v_cmp_gt_u32 vcc, 2048, v3"); e("s_nop 1"); e("v_cndmask_b32 v4, v5, v4, vcc")
    e("v_cmp_gt_u32 vcc, 33, v1"); e("s_nop 1"); e("v_cndmask_b32 v4, v5, v4, vcc")
    sTX, sTA, sTB = 65, 66, 67
    e(f"s_mov_b32 s{sTX}, 0"); e(f"s_mov_b32 s{sTA}, 0"); e(f"s_mov_b32 s{sTB}, 0")
    def touch_x(tag='tx'):
        e(f"buffer_load_dword v8, v4, s[{X}:{X+3}], s{sTX} offen"); vm.issue(tag)
        e(f"s_add_u32 s{sTX}, s{sTX}, 128")
    if o['touch']: touch_x('t0')
    e("v_mul_u32_u24 v6, 43, v1"); e("v_lshrrev_b32 v6, 7, v6"); e("v_mul_u32_u24 v7, 3, v6"); e("v_sub_u32 v7, v1, v7")
    e("v_mul_u32_u24 v6, 1280, v6"); e("v_lshl_add_u32 v6, v7, 7, v6")
    e(f"s_mul_i32 s{T0}, s{sCQ}, 320"); e(f"s_and_b32 s{T0}, s{T0}, 0xffffff80"); e(f"s_mul_i32 s{T1}, s{sQ}, 3840"); e(f"s_add_u32 s{T0}, s{T0}, s{T1}")
    e(f"v_add_u32 v6, s{T0}, v6"); e("v_cmp_gt_u32 vcc, 9, v1"); e("s_nop 1"); e("v_cndmask_b32 v6, v5, v6, vcc")
    e(f"s_mul_i32 s{T0}, s{sCQ}, 14"); e(f"s_add_u32 s{T1}, s{T0}, 13"); e(f"s_lshr_b32 s{T0}, s{T0}, 3"); e(f"s_lshr_b32 s{T1}, s{T1}, 3")
    e(f"s_add_u32 s{T1}, s{T1}, 1"); e(f"s_lshl_b32 s{T0}, s{T0}, 9"); e(f"s_lshl_b32 s{T1}, s{T1}, 9"); e(f"s_min_u32 s{T1}, s{T1}, 3456")
    e("v_lshlrev_b32 v7, 7, v1"); e(f"v_add_u32 v7, s{T0}, v7"); e(f"v_cmp_gt_u32 vcc, s{T1}, v7")
    e(f"s_mul_i32 s{T2}, s{sQ}, 3456"); e(f"v_add_u32 v7, s{T2}, v7"); e("v_cndmask_b32 v7, v5, v7, vcc")
    def touch_w(tag='tw'):
        e(f"buffer_load_dword v8, v6, s[{TA}:{TA+3}], s{sTA} offen"); vm.issue(tag)
        e(f"buffer_load_dword v8, v7, s[{TB}:{TB+3}], s{sTB} offen"); vm.issue(tag)
        e(f"s_add_u32 s{sTA}, s{sTA}, {32*3840}"); e(f"s_add_u32 s{sTB}, s{sTB}, {32*3456}")
    if o['touch']:
        touch_w('t0'); touch_w('t0'); touch_x('t0'); touch_w('t0')
        for j in range(3, DW):
            if j % 2 == 0: touch_x()
            touch_w()
    stamp(11)
    e("v_lshrrev_b32 v12, 1, v1")
    e(f"v_lshlrev_b32 v13, 1, v12"); e(f"v_add_u32 v13, {GTAB}, v13")
    e(f"v_add_u32 v9, 1280, v13"); e(f"s_lshl_b32 s{T0}, s{sROT}, 7"); e(f"v_add_u32 v13, s{T0}, v13")
    e("v_lshrrev_b32 v14, 3, v12"); e("v_and_b32 v14, 1, v14"); e("v_xor_b32 v14, 1, v14"); e("v_lshlrev_b32 v14, 5, v14")
    e("v_lshl_add_u32 v14, v12, 6, v14"); e("v_and_b32 v15, 1, v1"); e("v_lshl_add_u32 v14, v15, 4, v14")
    for sl in range(4): e(f"v_add_u32 v{24+sl}, {WBASE + 7*2048 + sl*16384}, v14")
    NU = 7
    RV = 44
    TRA = 140
    sSRC = 8; sDST = 16
    labr = e.newlabel('rpsetup')
    e(f"s_cmp_eq_u32 s{sISA}, 1"); e(f"s_cbranch_scc1 {labr}")
    e("v_lshrrev_b32 v10, 3, v1"); e("v_mul_u32_u24 v10, 1280, v10"); e("v_and_b32 v11, 7, v1"); e("v_lshl_add_u32 v10, v11, 4, v10")
    e("v_lshrrev_b32 v16, 4, v1"); e("v_bfe_u32 v17, v1, 2, 2"); e("v_and_b32 v18, 3, v1"); e("v_lshlrev_b32 v21, 4, v1")
    UO, U2 = 88, 92
    srd(e, UO, 12, 640*1280); srd(e, U2, 20, 1728*1280)
    for m in range(NU):
        sU, sC, sIV = T0, T1, T2
        e(f"s_sub_u32 s{T3}, s{sFLAG}, 144"); e(f"s_mul_i32 s{T3}, s{T3}, {NU}"); e(f"s_add_u32 s{T3}, s{T3}, {m}")
        e(f"s_mul_i32 s{sU}, s{T3}, 205"); e(f"s_lshr_b32 s{sU}, s{sU}, 11")
        e(f"s_mul_i32 s{T4}, s{sU}, 10"); e(f"s_sub_u32 s{sC}, s{T3}, s{T4}")
        e(f"s_cmp_lt_u32 s{T3}, 740"); e(f"s_cselect_b32 s{sIV}, 0, {BIG}")
        e(f"s_cmp_lt_u32 s{sU}, 20")
        e(f"s_cselect_b32 s{T4}, 0, 20"); e(f"s_cselect_b32 s{T5}, 3, 2"); csel(e, T6, 512, 2048)
        e(f"s_cselect_b32 s{70}, 1, 0")
        e(f"s_sub_u32 s{T4}, s{sU}, s{T4}"); e(f"s_mul_i32 s{T4}, s{T4}, {32*1280}")
        e(f"s_lshl_b32 s70, s70, 31"); e(f"s_or_b32 s{sSRC+m}, s{T4}, s70")
        e(f"s_lshl_b32 s{T4}, s{sC}, 7"); e(f"s_or_b32 s{T4}, s{T4}, s{sIV}"); e(f"v_add_u32 v{RV+m}, s{T4}, v10")
        e(f"v_lshlrev_b32 v19, s{T5}, v16"); e("v_add_u32 v19, v19, v17")
        e("v_lshlrev_b32 v19, 7, v19"); e("v_lshl_add_u32 v19, v18, 3, v19"); e(f"v_add_u32 v{TRA+3*m}, {RSCR + m*4096}, v19")
        e(f"v_add_u32 v{TRA+3*m+1}, s{T6}, v{TRA+3*m}"); e(f"v_or_b32 v{TRA+3*m+2}, s{sIV}, v21")
        e(f"s_lshl_b32 s{T3}, s{sC}, 2")
        for tt in range(4):
            e(f"s_mul_i32 s{T4}, s{T3}, 52"); e(f"s_lshr_b32 s{T4}, s{T4}, 8"); e(f"s_mul_i32 s{T4}, s{T4}, 365")
            e(f"s_add_u32 s{T4}, s{T4}, s{T3}"); e(f"s_mul_i32 s{T5}, s{sU}, 5"); e(f"s_add_u32 s{T4}, s{T4}, s{T5}")
            e(f"s_lshl_b32 s{T4}, s{T4}, 10"); e(f"s_add_u32 s{T4}, s{T4}, {WP_OFF}"); e(f"s_and_b32 s{T4}, s{T4}, 0x00ffffff")
            e(f"v_writelane_b32 v170, s{T4}, {4*m+tt}")
            e(f"s_add_u32 s{T3}, s{T3}, 1")
    e.label(labr)
    if o['touch']: vm.wait('t0')
    else: vm.wait('gate')
    if o['touch']: e("s_barrier")
    GV = 100
    labg = e.newlabel('gv')
    e(f"s_cmp_eq_u32 s{sISA}, 1"); e(f"s_cbranch_scc0 {labg}")
    for st in range(20):
        e(f"ds_read_u16 v{GV+2*st}, v13"); e("v_add_u32 v13, 64, v13"); e("v_subrev_u32 v23, 1280, v13")
        e("v_cmp_le_u32 vcc, v9, v13"); e("s_nop 1"); e("v_cndmask_b32 v13, v13, v23, vcc")
    e("s_waitcnt lgkmcnt(0)")
    for st in range(20):
        e(f"v_lshl_or_b32 v{GV+2*st}, v{GV+2*st}, 16, v{GV+2*st}"); e(f"v_mov_b32 v{GV+2*st+1}, v{GV+2*st}")
    e.label(labg)
    def gate_write(st):
        e(f"ds_write2_b64 v{24 + st % NW}, v[{GV+2*st}:{GV+2*st+1}], v[{GV+2*st}:{GV+2*st+1}] offset1:1")
    def gated(sts):
        lab = e.newlabel('gw')
        e(f"s_cmp_eq_u32 s{sISA}, 1"); e(f"s_cbranch_scc0 {lab}")
        for st in sts: gate_write(st)
        e("s_waitcnt lgkmcnt(0)")
        e.label(lab)
    gated([0, 1, 2])
    e("s_barrier")
    e("s_barrier")
    e("s_setprio 2")
    def rp_issue(m):
        lw, ld = e.newlabel('rpw'), e.newlabel('rpd')
        e(f"s_and_b32 s{T4}, s{sSRC+m}, 0x7fffffff"); e(f"s_bitcmp1_b32 s{sSRC+m}, 31"); e(f"s_cbranch_scc1 {lw}")
        for srd_, lab in ((92, None), (88, lw)):
            if lab: e(f"s_branch {ld}"); e.label(lab)
            for d in range(4):
                e(f"s_mov_b32 m0, {RSCR + m*4096 + d*1024}")
                e(f"buffer_load_dwordx4 v{RV+m}, s[{srd_}:{srd_+3}], s{T4} offen lds")
                if d < 3: e(f"s_add_u32 s{T4}, s{T4}, {8*1280}")
        e.label(ld)
        for d in range(4): vm.issue(f'rp{m}')
    def rp_finish(m):
        vm.wait(f'rp{m}')
        D = 176 + 16 * (m % 2)
        for tt in range(4):
            e(f"ds_read_b64_tr_b16 v[{D+4*tt}:{D+4*tt+1}], v{TRA+3*m} offset:{32*tt}")
            e(f"ds_read_b64_tr_b16 v[{D+4*tt+2}:{D+4*tt+3}], v{TRA+3*m+1} offset:{32*tt}")
        for tt in range(4): e(f"v_readlane_b32 s{16+tt}, v170, {4*m+tt}")
        e("s_waitcnt lgkmcnt(0)")
        for tt in range(4):
            e(f"buffer_store_dwordx4 v[{D+4*tt}:{D+4*tt+3}], v{TRA+3*m+2}, s[{WS}:{WS+3}], s{16+tt} offen sc1"); vm.issue('rps')
    R = o['rpj']
    def b_only(fn):
        lab = e.newlabel('bo')
        e(f"s_cmp_eq_u32 s{sISA}, 1"); e(f"s_cbranch_scc1 {lab}"); fn(); e.label(lab)
    for j in range(18):
        if o['touch'] and j + DW < 20: touch_w()
        if o['touch'] and j % 2 == 0 and (j // 2 + 5) < 10: touch_x()
        if j + 3 < 20: gated([j + 3])
        if j == R:
            def f():
                for m in range(NU): rp_issue(m)
                e("v_mov_b32 v28, 0"); e(f"buffer_load_dword v29, v28, s[{DBG}:{DBG+3}], 0 offen sc1"); vm.issue('chk')
            b_only(f)
        if R + 3 <= j < R + 7:
            ms = [m for m in (2 * (j - R - 3), 2 * (j - R - 3) + 1) if m < NU]
            b_only(lambda: [rp_finish(m) for m in ms])
        if j == R + 9:
            def f():
                lo, lk = e.newlabel('rcl'), e.newlabel('rck')
                vm.wait('rps')
                e(f"s_mov_b32 s{T0}, 0x40000")
                e.label(lo)
                e("v_cmp_eq_u32 vcc, 1, v29"); e(f"s_cbranch_vccnz {lk}")
                e(f"buffer_load_dword v29, v28, s[{DBG}:{DBG+3}], 0 offen sc1"); e("s_waitcnt vmcnt(0)")
                e(f"s_sub_u32 s{T0}, s{T0}, 1"); e(f"s_cmp_lg_u32 s{T0}, 0"); e(f"s_cbranch_scc1 {lo}")
                e.label(lk)
                e(f"s_sub_u32 s{T0}, s{sFLAG}, 144"); e(f"s_lshl_b32 s{T0}, s{T0}, 6"); e(f"s_add_u32 s{T0}, s{T0}, {FL2_OFF}")
                e("v_mov_b32 v30, 1"); e("s_mov_b64 exec, 1")
                e(f"buffer_store_dword v30, v28, s[{WS}:{WS+3}], s{T0} offen sc1"); vm.issue('flag')
                e("s_mov_b64 exec, -1")
            b_only(f)
        loader_early(j, vm)
        stepbar(j)
    e("s_setprio 0")
    loader_tail()

    e.label("L_phase3")
    e(f"s_cmp_ge_u32 s{sWAVE}, 4"); lp_ = e.newlabel('hp'); e(f"s_cbranch_scc0 {lp_}"); e("s_setprio 1"); e.label(lp_)
    e("v_lshlrev_b32 v4, 4, v1")
    e(f"s_cmp_eq_u32 s{sN3}, 9"); e(f"s_cselect_b32 s{T6}, {BIG}, 0"); e(f"v_or_b32 v5, s{T6}, v4")
    e(f"s_cmp_lt_u32 s{sWAVE}, 2"); e("s_cbranch_scc1 L_p3_fo")
    e(f"s_add_u32 s{T0}, s{sWAVE}, 2"); e(f"s_sub_u32 s{T1}, s{sWAVE}, 4"); e(f"s_cmp_ge_u32 s{sWAVE}, 4"); e(f"s_cselect_b32 s{T0}, s{T1}, s{T0}")
    e(f"s_mul_i32 s{T2}, s{T0}, 9")
    e(f"s_lshr_b32 s{T4}, s{sI3}, 1"); e(f"s_mul_i32 s{T4}, s{T4}, 7"); e(f"s_add_u32 s{T4}, s{T4}, 144")
    e(f"s_lshr_b32 s{T5}, s{T2}, 3"); e(f"s_add_u32 s{T5}, s{T5}, s{T4}")
    e(f"s_add_u32 s{T2}, s{T2}, 8"); e(f"s_lshr_b32 s{T2}, s{T2}, 3"); e(f"s_add_u32 s{T2}, s{T2}, s{T4}")
    e(f"v_mov_b32 v2, s{T5}"); e(f"v_mov_b32 v3, s{T2}"); e("v_cmp_gt_u32 vcc, 4, v1"); e("s_nop 1"); e("v_cndmask_b32 v2, v3, v2, vcc")
    e("s_branch L_p3_fd")
    e.label("L_p3_fo")
    e(f"s_lshl_b32 s{T4}, s{sI3}, 6"); e(f"s_mul_i32 s{T5}, s{T4}, 575"); e(f"s_lshr_b32 s{T5}, s{T5}, 16")
    e(f"s_add_u32 s{T4}, s{T4}, 63"); e(f"s_mul_i32 s{T4}, s{T4}, 575"); e(f"s_lshr_b32 s{T4}, s{T4}, 16")
    e(f"s_lshl_b32 s{T5}, s{T5}, 3"); e(f"s_lshl_b32 s{T4}, s{T4}, 3"); e(f"s_lshl_b32 s{T1}, s{sWAVE}, 2")
    e(f"s_add_u32 s{T5}, s{T5}, s{T1}"); e(f"s_add_u32 s{T4}, s{T4}, s{T1}")
    e(f"v_mov_b32 v2, s{T5}"); e(f"v_mov_b32 v3, s{T4}"); e("v_cmp_gt_u32 vcc, 4, v1"); e("s_nop 1"); e("v_cndmask_b32 v2, v3, v2, vcc")
    e("v_and_b32 v3, 3, v1"); e("v_add_u32 v2, v2, v3")
    e.label("L_p3_fd")
    e("v_lshlrev_b32 v2, 6, v2"); e(f"v_mov_b32 v3, {BIG}"); e("v_cmp_gt_u32 vcc, 8, v1"); e("s_nop 1"); e("v_cndmask_b32 v2, v3, v2, vcc")
    e("v_mov_b32 v7, 0"); e("v_cmp_gt_u32 vcc, 8, v1"); e("s_nop 1"); e("v_cndmask_b32 v7, 0, 1, vcc")
    e(f"s_mov_b32 s{T1}, {FL_OFF}")
    e(f"s_cmp_ge_u32 s{sWAVE}, 4"); e("s_cbranch_scc1 L_p3_L")
    def w_addr(t):
        return [f"s_add_u32 s{sIW}, s{sIDX}, {t}", f"s_sub_u32 s{sSO}, s{sIW}, s{sN3}", f"s_cmp_ge_u32 s{sIW}, s{sN3}", f"s_cselect_b32 s{sIW}, s{sSO}, s{sIW}",
                f"s_mul_i32 s{sSO}, s{sIW}, 5120", f"s_add_u32 s{sSO}, s{sSO}, s{sWP}", f"s_add_u32 s{sSO4}, s{sSO}, 4096"]
    def w_ld(t, q):
        b = WB3 + 20 * (t % PW); vo = 5 if t == 9 else 4
        if q < 4: return f"buffer_load_dwordx4 v[{b+4*q}:{b+4*q+3}], v{vo}, s[{WS}:{WS+3}], s{sSO} offen offset:{q*1024} sc1"
        return f"buffer_load_dwordx4 v[{b+4*q}:{b+4*q+3}], v{vo}, s[{WS}:{WS+3}], s{sSO4} offen sc1"
    sAO = 70
    def a_addr(t):
        return [f"s_add_u32 s{sIA}, s{sIDX}, {t}", f"s_sub_u32 s{sAO}, s{sIA}, s{sN3}", f"s_cmp_ge_u32 s{sIA}, s{sN3}", f"s_cselect_b32 s{sIA}, s{sAO}, s{sIA}",
                f"s_lshl_b32 s{sAO}, s{sIA}, 12", f"s_add_u32 s{sAO}, s{sAO}, s{sACT}"]
    def a_ld(t, mt):
        b = AB + 16 * (t % 3); vo = 5 if t == 9 else 4
        return f"buffer_load_dwordx4 v[{b+4*mt}:{b+4*mt+3}], v{vo}, s[{WS}:{WS+3}], s{sAO} offen offset:{mt*1024} sc1"
    def p3_main(var):
        vm3 = VM(e)
        first = [4, 5] if var == 'L' else [0, 1]
        later = [] if var == 'L' else [2, 3, 4, 5]
        e(f"buffer_load_dword v6, v2, s[{WS}:{WS+3}], s{T1} offen sc1"); vm3.issue('poll')
        for t in first:
            for x in w_addr(t): e(x)
            for q in range(5): e(w_ld(t, q)); vm3.issue(f'w{t}')
        for r in range(80): e(f"v_mov_b32 v{A3+r}, 0")
        vm3.wait('poll')
        lp, lk = e.newlabel('poll'), e.newlabel('pollok')
        e(f"s_mov_b32 s{T0}, 0x40000")
        e.label(lp)
        e("v_cmp_ne_u32 vcc, v6, v7"); e(f"s_cbranch_vccz {lk}")
        e(f"buffer_load_dword v6, v2, s[{WS}:{WS+3}], s{T1} offen sc1"); e("s_waitcnt vmcnt(0)")
        e(f"s_sub_u32 s{T0}, s{T0}, 1"); e(f"s_cmp_lg_u32 s{T0}, 0"); e(f"s_cbranch_scc1 {lp}")
        e.label(lk)
        stamp(5)
        for t in (0, 1):
            for x in a_addr(t): e(x)
            for mt in range(4): e(a_ld(t, mt)); vm3.issue(f'a{t}')
        if var == 'C':
            e(f"s_lshl_b32 s{T2}, s{sI3}, 8"); e(f"s_add_u32 s{T2}, s{T2}, {G_OFF}"); e("v_lshlrev_b32 v2, 2, v1")
            e(f"s_cmp_eq_u32 s{sWAVE}, 0"); e(f"s_cselect_b32 s{T3}, 0, {BIG}"); e(f"v_or_b32 v2, s{T3}, v2")
            e(f"buffer_load_dword v3, v2, s[{WS}:{WS+3}], s{T2} offen sc1"); vm3.issue('g')
        for t in later:
            for x in w_addr(t): e(x)
            for q in range(5): e(w_ld(t, q)); vm3.issue(f'w{t}')
        for t in range(10):
            idx = [i for i, tg in enumerate(vm3.q) if tg in (f'a{t}', f'w{t}')]
            if idx: vm3.wait(vm3.q[max(idx)])
            if t == 9:
                e(f"s_cmp_eq_u32 s{sN3}, 9"); e("s_cbranch_scc1 L_p3_main_done")
            bw = WB3 + 20 * (t % PW); ba = AB + 16 * (t % 3)
            doa = t + 2 < 10; dow = t + PW < 10
            pre = (a_addr(t + 2) if doa else []) + (w_addr(t + PW) if dow else [])
            for q in range(5):
                for mt in range(4):
                    a = A3 + (q * 4 + mt) * 4
                    e(f"v_mfma_f32_16x16x32_bf16 v[{a}:{a+3}], v[{bw+4*q}:{bw+4*q+3}], v[{ba+4*mt}:{ba+4*mt+3}], v[{a}:{a+3}]")
                    if q == 0:
                        for x in pre[mt*4:(mt+1)*4]: e(x)
                if doa and q < 4: e(a_ld(t + 2, q)); vm3.issue(f'a{t+2}')
                if dow: e(w_ld(t + PW, q)); vm3.issue(f'w{t+PW}')
        e("s_branch L_p3_main_done") if var == 'C' else None
    p3_main('C')
    e.label("L_p3_L")
    p3_main('L')
    e.label("L_p3_main_done")
    stamp(6)
    e("s_setprio 0")
    srd(e, M1, 26, 2048 * 1280)
    srd(e, M2, 22, 1280)
    e("s_waitcnt vmcnt(0)")
    e("v_lshrrev_b32 v6, 4, v1"); e("v_lshlrev_b32 v6, 3, v6"); e(f"s_mul_i32 s{T4}, s{sJ3}, 160"); e(f"v_add_u32 v6, s{T4}, v6")
    for r in range(3):
        e(f"s_add_u32 s{T0}, s{sWAVE}, {8*r}"); e(f"s_lshr_b32 s{T0}, s{T0}, 2"); e(f"s_lshl_b32 s{T0}, s{T0}, 5")
        e(f"v_add_u32 v{96+r}, s{T0}, v6")
        e(f"buffer_load_dwordx2 v[{88+2*r}:{89+2*r}], v{96+r}, s[{M2}:{M2+3}], 0 offen")
    e(f"s_mul_i32 s{T0}, s{sWAVE}, 20480"); e(f"v_add_u32 v2, s{T0}, v4")
    lz = e.newlabel('t0')
    e(f"s_cmp_eq_u32 s{sWAVE}, 0"); e(f"s_cbranch_scc0 {lz}")
    e("v_lshlrev_b32 v7, 2, v1"); e("ds_write_b32 v7, v3")
    e("s_branch L_red_w1")
    e.label(lz)
    e(f"ds_write_b128 v2, v[{A3}:{A3+3}]")
    e.label("L_red_w1")
    for tau in range(1, 20): e(f"ds_write_b128 v2, v[{A3+4*tau}:{A3+4*tau+3}] offset:{tau*1024}")
    e("s_waitcnt lgkmcnt(0)")
    e("s_barrier")
    stamp(15)
    RD = 136
    for r in range(3):
        if r == 2:
            e(f"s_cmp_ge_u32 s{sWAVE}, 4"); e("s_cbranch_scc1 L_red_rd_done")
        e(f"s_add_u32 s{T0}, s{sWAVE}, {8*r}"); e(f"s_and_b32 s{T2}, s{T0}, 3")
        e(f"s_lshl_b32 s{T3}, s{T0}, 10"); e(f"v_add_u32 v2, s{T3}, v4"); e("v_add_u32 v3, 0x14000, v2")
        for w in range(8):
            e(f"ds_read_b128 v[{RD+32*r+4*w}:{RD+32*r+4*w+3}], v{2 if w < 4 else 3} offset:{(w % 4) * 20480}")
        e("v_and_b32 v7, 15, v1"); e(f"s_lshl_b32 s{T5}, s{T2}, 4"); e(f"v_add_u32 v7, s{T5}, v7")
        e(f"v_lshlrev_b32 v{100+r}, 2, v7"); e(f"ds_read_b32 v{104+r}, v{100+r}")
        e(f"s_lshl_b32 s{T4}, s{sI3}, 6"); e(f"v_add_u32 v7, s{T4}, v7"); e(f"v_mul_u32_u24 v7, 1280, v7"); e(f"v_add_u32 v{96+r}, v7, v{96+r}")
    e.label("L_red_rd_done")
    e("s_waitcnt vmcnt(0)")
    for r in range(3):
        if r == 2:
            e(f"s_cmp_ge_u32 s{sWAVE}, 4"); e("s_cbranch_scc1 L_fin")
        P = RD + 32 * r
        e("s_waitcnt lgkmcnt(0)") if r == 0 else None
        if r == 0:
            lo = e.newlabel('own')
            e(f"s_cmp_eq_u32 s{sWAVE}, 0"); e(f"s_cbranch_scc0 {lo}")
            for q in range(4): e(f"v_mov_b32 v{P+q}, v{A3+q}")
            e.label(lo)
        for q in range(4):
            e(f"v_add_f32 v{P+q}, v{P+q}, v{P+4+q}")
            e(f"v_add_f32 v{P+8+q}, v{P+8+q}, v{P+12+q}"); e(f"v_add_f32 v{P+16+q}, v{P+16+q}, v{P+20+q}")
            e(f"v_add_f32 v{P+24+q}, v{P+24+q}, v{P+28+q}")
            e(f"v_add_f32 v{P+8+q}, v{P+8+q}, v{P+16+q}"); e(f"v_add_f32 v{P+8+q}, v{P+8+q}, v{P+24+q}")
        bb = 88 + 2 * r
        e(f"v_lshlrev_b32 v108, 16, v{bb}"); e(f"v_and_b32 v109, 0xffff0000, v{bb}"); e(f"v_lshlrev_b32 v110, 16, v{bb+1}"); e(f"v_and_b32 v111, 0xffff0000, v{bb+1}")
        e(f"v_sub_f32 v112, 1.0, v{104+r}")
        for q in range(4):
            e(f"v_add_f32 v{P+8+q}, v{P+8+q}, v{108+q}"); e(f"v_mul_f32 v{P+8+q}, v{P+8+q}, v112"); e(f"v_fma_f32 v{P+8+q}, v{P+q}, v{104+r}, v{P+8+q}")
        e(f"v_cvt_pk_bf16_f32 v{P}, v{P+8}, v{P+9}"); e(f"v_cvt_pk_bf16_f32 v{P+1}, v{P+10}, v{P+11}")
        e(f"buffer_store_dwordx2 v[{P}:{P+1}], v{96+r}, s[{M1}:{M1+3}], 0 offen")
    e.label("L_fin")
    if o['ts']:
        stamp(7)
        e(f"s_lshl_b32 s{T0}, s2, 3"); e(f"s_add_u32 s{T0}, s{T0}, s{sWAVE}"); e(f"s_lshl_b32 s{T0}, s{T0}, 6"); e(f"s_add_u32 s{T0}, s{T0}, {TS_OFF}")
        e("v_lshlrev_b32 v2, 2, v1"); e("s_mov_b64 exec, 0xffff")
        e(f"buffer_store_dword v0, v2, s[{WS}:{WS+3}], s{T0} offen")
    if o['span']:
        stamp(7)
        e("v_readlane_b32 s56, v0, 8"); e("s_nop 3"); e("v_subrev_u32 v0, s56, v0")
        e(f"s_lshl_b32 s57, s2, 3"); e(f"s_add_u32 s57, s57, s{sWAVE}")
        e(f"s_cmp_eq_u32 s57, {o['span_a']}"); e("s_cselect_b32 s58, 4, -1")
        e(f"s_cmp_eq_u32 s57, {o['span_b']}"); e("s_cselect_b32 s58, 32, s58")
        e("s_cmp_eq_u32 s58, -1"); e("s_cbranch_scc1 L_end")
        e("v_lshlrev_b32 v2, 2, v1"); e("v_add_u32 v2, s58, v2"); e("s_mov_b64 exec, 0xfe")
        e(f"buffer_store_dword v0, v2, s[{DBG}:{DBG+3}], 0 offen")
    e.label("L_end")
    body, nh = e.text()
    hdr = open('gated_mix__sliding_local_dilated__dense_activation_squared_relu__prompt.s.ref').read().split('\n')
    comments = [l for l in hdr if l.startswith(';') and '@launch' not in l and 'Override launch' not in l and 'grid=ceil' not in l]
    return "\n".join(comments) + f"""
; @launch grid=(256,1,1) block=(512,1,1) lds={LDS_BYTES}
.amdgcn_target "amdgcn-amd-amdhsa--gfx950"
.text
.globl {KNAME}
.p2align 8
.type {KNAME},@function
{KNAME}:
{body}
    s_endpgm
.section .rodata,"a"
.p2align 6
.amdhsa_kernel {KNAME}
  .amdhsa_next_free_vgpr 256
  .amdhsa_next_free_sgpr 102
  .amdhsa_accum_offset 256
  .amdhsa_group_segment_fixed_size 0
  .amdhsa_kernarg_size 96
  .amdhsa_user_sgpr_count 2
  .amdhsa_user_sgpr_kernarg_segment_ptr 1
  .amdhsa_system_sgpr_workgroup_id_x 1
.end_amdhsa_kernel
"""

if __name__ == "__main__":
    import argparse
    ap = argparse.ArgumentParser()
    ap.add_argument('-o', default='k.s'); ap.add_argument('--stop', default=None); ap.add_argument('--ts', action='store_true'); ap.add_argument('--span', action='store_true'); ap.add_argument('--touch', action='store_true'); ap.add_argument('--norot', action='store_true'); ap.add_argument('--steps', action='store_true'); ap.add_argument('--noprio', action='store_true'); ap.add_argument('--rpj', type=int, default=0); ap.add_argument('--ea', type=int, default=4); ap.add_argument('--eb', type=int, default=4); ap.add_argument('--irot', action='store_true')
    a = ap.parse_args()
    open(a.o, 'w').write(gen(dict(stop=a.stop, ts=a.ts, span=a.span, touch=a.touch, rot=not a.norot, steps=a.steps, prio=not a.noprio, rpj=a.rpj, ea=a.ea, eb=a.eb, irot=a.irot)))
```

```python
import sys
from emit import Emitter

KNAME = "gated_mix__sliding_local_dilated__dense_activation_squared_relu__prompt_kernel"

HP_OFF = 0x0
OP_OFF = 0x700000
WP_OFF = 0xA00000
G_OFF = 0xD00000
FL_OFF = 0xD10000
FL2_OFF = 0xD14000
TS_OFF = 0xD20000
WS_SIZE = 0xE00000

NX = 4
NW = 4
XU = 16384
WBASE = NX * XU
RSCR = WBASE + NW * 16384
DW = 9
GTAB = RSCR
PQ = 488
QB = 32768
OB = 131072 + 2048
PO = 176
LDS_BYTES = 163840

BIG = 0x80000000

sP = 2
sWAVE, sISA, sRB, sCG = 32, 33, 34, 35
X, W, WS, M1, M2 = 36, 40, 44, 48, 52
T0, T1, T2, T3, T4, T5, T6, T7 = 56, 57, 58, 59, 60, 61, 62, 63
sLW = 64
sKX, sKW0, sKW1, sKWH, sKWE = 65, 66, 67, 68, 69
sIT = 77
sMH, sNH = 74, 75
sT0 = 76
sPITCH = 77
sI3, sJ3 = 78, 79
sACT, sWP, sIDX = 80, 81, 82
sN3, sIW, sIA, sSO, sSO4, sCHK = 64, 65, 66, 67, 68, 69
sODD = 83
sROT = 3
sFLAG = 84
sRH, sCQ, sQ = 100, 101, 85
sTS = 86
sEX = 88
sM = 90
DBG = 96

def srd(e, base, ptr, nbytes):
    e(f"s_mov_b32 s{base}, s{ptr}")
    e(f"s_and_b32 s{base+1}, s{ptr+1}, 0xffff")
    if isinstance(nbytes, int): e(f"s_mov_b32 s{base+2}, {nbytes}")
    else: e(f"s_mov_b32 s{base+2}, {nbytes}")
    e(f"s_mov_b32 s{base+3}, 0x20000")

def csel(e, dst, a, b):
    e(f"s_mov_b32 s{dst}, {b}")
    e(f"s_cselect_b32 s{dst}, {a}, s{dst}")

class VM:
    def __init__(self, e): self.e = e; self.q = []
    def issue(self, tag): self.q.append(tag)
    def wait(self, tag):
        idx = max(i for i, t in enumerate(self.q) if t == tag)
        n = len(self.q) - 1 - idx
        assert n < 64, n
        self.e(f"s_waitcnt vmcnt({n})")
        self.q = self.q[idx + 1:]
    def waitall(self):
        self.e("s_waitcnt vmcnt(0)"); self.q = []

def gen(opts=None):
    o = dict(bari=False, p3prio=True, spr=True, ctouch=True, nl=12, irot=False, ea=4, eb=4, rot=True, rotb=2, rpj=0, prio=True, steps=False, touch=False, stop=None, ts=False, span=False, span_a=8*9+0, span_b=8*14+0)
    if opts: o.update(opts)
    e = Emitter()
    nstamp = [0]
    def stamp(idx):
        if o['span'] and idx in (8, 0, 1, 2, 4, 5, 6, 7, 3):
            e(f"s_memrealtime s[{sTS}:{sTS+1}]"); e("s_waitcnt lgkmcnt(0)")
            e(f"v_writelane_b32 v0, s{sTS}, {idx}")
            return
        if not o['ts']: return
        e(f"s_memrealtime s[{sTS}:{sTS+1}]")
        e("s_waitcnt lgkmcnt(0)")
        e(f"v_writelane_b32 v0, s{sTS}, {idx}")

    def stepbar(j):
        if o['steps']:
            e(f"s_memtime s[{sTS}:{sTS+1}]"); e("s_waitcnt lgkmcnt(0)"); e(f"v_writelane_b32 v250, s{sTS}, {j}")
        e("s_barrier")
        if o['steps']:
            e(f"s_memtime s[{sTS}:{sTS+1}]"); e("s_waitcnt lgkmcnt(0)"); e(f"v_writelane_b32 v251, s{sTS}, {j}")
    e(f"s_cmp_ge_u32 s2, 256")
    e("s_cbranch_scc1 L_end")
    if o['ts'] or o['span']:
        e(f"s_memrealtime s[{sTS}:{sTS+1}]")
    e("s_load_dwordx16 s[8:23], s[0:1], 0")
    e("s_load_dwordx8 s[24:31], s[0:1], 64")
    e("v_and_b32 v1, 63, v0")
    e("v_lshrrev_b32 v2, 6, v0")
    e("s_nop 0")
    e(f"v_readfirstlane_b32 s{sWAVE}, v2")
    e(f"s_cmp_eq_u32 s{sWAVE}, 4"); e("s_cbranch_scc1 L_ldx")
    e(f"s_cmp_eq_u32 s{sWAVE}, 5"); e("s_cbranch_scc1 L_ldw0")
    e(f"s_cmp_eq_u32 s{sWAVE}, 6"); e("s_cbranch_scc1 L_ldw1")
    e(f"s_cmp_eq_u32 s{sWAVE}, 7"); e("s_cbranch_scc1 L_helper")
    def prologue(tag):
        e(f"s_and_b32 s{sRH}, s2, 1"); e(f"s_bfe_u32 s{sCQ}, s2, 0x20001"); e(f"s_lshr_b32 s{sQ}, s2, 3")
        e(f"s_cmp_lt_u32 s{sQ}, 18"); e(f"s_cselect_b32 s{sISA}, 1, 0"); e(f"s_cbranch_scc0 L_role_b{tag}")
        e(f"s_mul_i32 s{sRB}, s{sRH}, 9"); e(f"s_lshr_b32 s{T2}, s{sQ}, 1"); e(f"s_add_u32 s{sRB}, s{sRB}, s{T2}")
        e(f"s_lshl_b32 s{sCG}, s{sCQ}, 1"); e(f"s_and_b32 s{T2}, s{sQ}, 1"); e(f"s_add_u32 s{sCG}, s{sCG}, s{T2}")
        e(f"s_branch L_role_done{tag}")
        e.label(f"L_role_b{tag}")
        e(f"s_mul_i32 s{T2}, s{sCQ}, 14"); e(f"s_add_u32 s{T2}, s{T2}, s{sQ}"); e(f"s_sub_u32 s{T2}, s{T2}, 18")
        e(f"s_lshr_b32 s{sCG}, s{T2}, 3"); e(f"s_and_b32 s{T2}, s{T2}, 7"); e(f"s_lshl_b32 s{sRB}, s{sRH}, 3"); e(f"s_add_u32 s{sRB}, s{sRB}, s{T2}")
        e.label(f"L_role_done{tag}")
        if o['rot']:
            e(f"s_mul_i32 s{T2}, s{sRH}, 9"); e(f"s_lshl_b32 s{T3}, s{sRH}, 3"); e(f"s_cmp_eq_u32 s{sISA}, 1"); e(f"s_cselect_b32 s{T2}, s{T2}, s{T3}")
            e(f"s_sub_u32 s{sROT}, s{sRB}, s{T2}")
            e(f"s_and_b32 s{T2}, s{sCG}, 1"); e(f"s_mul_i32 s{T2}, s{T2}, 5"); e(f"s_add_u32 s{sROT}, s{sROT}, s{T2}")
            e(f"s_cmp_eq_u32 s{sISA}, 1"); e(f"s_cselect_b32 s{T2}, 0, {o['rotb']}"); e(f"s_add_u32 s{sROT}, s{sROT}, s{T2}")
            e(f"s_cmp_ge_u32 s{sROT}, 10"); e(f"s_cselect_b32 s{T2}, 10, 0"); e(f"s_sub_u32 s{sROT}, s{sROT}, s{T2}")
            e(f"s_cmp_ge_u32 s{sROT}, 10"); e(f"s_cselect_b32 s{T2}, 10, 0"); e(f"s_sub_u32 s{sROT}, s{sROT}, s{T2}")
        else:
            e(f"s_mov_b32 s{sROT}, 0")
        e(f"s_and_b32 s{T0}, s2, 7"); e(f"s_lshr_b32 s{T1}, s2, 3")
        e(f"s_lshl_b32 s{sI3}, s{T0}, 2"); e(f"s_lshr_b32 s{T2}, s{T1}, 3"); e(f"s_add_u32 s{sI3}, s{sI3}, s{T2}")
        e(f"s_and_b32 s{sJ3}, s{T1}, 7")
        e(f"s_and_b32 s{sODD}, s{sCG}, 1")
        e(f"s_mul_i32 s{sT0}, s{sRB}, 114"); e(f"s_sub_u32 s{sT0}, s{sT0}, 14")
        e(f"s_cmp_eq_u32 s{sISA}, 1")
        csel(e, sPITCH, 3840, 3456)
        e(f"s_lshl_b32 s{T2}, s{sRB}, 3"); e(f"s_add_u32 s{T2}, s{T2}, s{sCG}")
        e(f"s_mul_i32 s{T3}, s{sRB}, 7"); e(f"s_add_u32 s{T3}, s{T3}, s{sCG}"); e(f"s_add_u32 s{T3}, s{T3}, 144")
        e(f"s_cmp_eq_u32 s{sISA}, 1")
        e(f"s_cselect_b32 s{sFLAG}, s{T2}, s{T3}")
        e("s_waitcnt lgkmcnt(0)")
        if o['ts'] or o['span']:
            e("v_mov_b32 v0, 0"); e(f"v_writelane_b32 v0, s{sTS}, 8")
        stamp(0)
        srd(e, X, 8, 2048*1280)
        e(f"s_cmp_eq_u32 s{sISA}, 1")
        e(f"s_cselect_b32 s{W}, s10, s16"); e(f"s_cselect_b32 s{T0}, s11, s17")
        csel(e, W+2, 640*3840, 640*3456)
        e(f"s_and_b32 s{W+1}, s{T0}, 0xffff"); e(f"s_mov_b32 s{W+3}, 0x20000")
        srd(e, WS, 30, WS_SIZE)
        srd(e, DBG, 28, 256)


    A3, AB, WB3 = 8, 88, 136
    PW = 6
    def p3_params():
        la, ld = e.newlabel('p3o'), e.newlabel('p3d')
        e(f"s_cmp_lt_u32 s{sWAVE}, 2"); e(f"s_cbranch_scc1 {la}")
        e(f"s_add_u32 s{T0}, s{sWAVE}, 2"); e(f"s_sub_u32 s{T1}, s{sWAVE}, 4"); e(f"s_cmp_ge_u32 s{sWAVE}, 4"); e(f"s_cselect_b32 s{T0}, s{T1}, s{T0}")
        e(f"s_mul_i32 s{T2}, s{T0}, 9")
        e(f"s_mul_i32 s{sACT}, s{sI3}, 54"); e(f"s_add_u32 s{sACT}, s{sACT}, s{T2}"); e(f"s_lshl_b32 s{sACT}, s{sACT}, 12")
        if HP_OFF: e(f"s_add_u32 s{sACT}, s{sACT}, {HP_OFF}")
        e(f"s_add_u32 s{T3}, s{T2}, 20"); e(f"s_mov_b32 s{sN3}, 9"); e(f"s_mov_b32 s{T6}, {BIG}")
        e(f"s_branch {ld}")
        e.label(la)
        e(f"s_mul_i32 s{T3}, s{sWAVE}, 10")
        e(f"s_mul_i32 s{sACT}, s{sI3}, 20"); e(f"s_add_u32 s{sACT}, s{sACT}, s{T3}"); e(f"s_lshl_b32 s{sACT}, s{sACT}, 12"); e(f"s_add_u32 s{sACT}, s{sACT}, {OP_OFF}")
        e(f"s_mov_b32 s{sN3}, 10"); e(f"s_mov_b32 s{T6}, 0")
        e.label(ld)
        e(f"s_mul_i32 s{sWP}, s{sJ3}, 74"); e(f"s_add_u32 s{sWP}, s{sWP}, s{T3}"); e(f"s_mul_i32 s{sWP}, s{sWP}, 5120"); e(f"s_add_u32 s{sWP}, s{sWP}, {WP_OFF}")
        if o['irot']:
            e(f"s_and_b32 s{sIDX}, s{sI3}, 3"); e(f"s_lshl_b32 s{sIDX}, s{sIDX}, 1"); e(f"s_add_u32 s{sIDX}, s{sIDX}, s{sJ3}")
        else:
            e(f"s_mov_b32 s{sIDX}, s{sJ3}")
        e(f"s_sub_u32 s{T4}, s{sIDX}, s{sN3}"); e(f"s_cmp_ge_u32 s{sIDX}, s{sN3}"); e(f"s_cselect_b32 s{sIDX}, s{T4}, s{sIDX}")
        e("v_lshrrev_b32 v6, 1, v1"); e(f"v_add_u32 v6, s{T3}, v6"); e("v_mul_u32_u24 v6, 10, v6")
        e(f"s_mul_i32 s{T4}, s{sJ3}, 5"); e(f"s_lshr_b32 s{T4}, s{T4}, 2"); e("v_and_b32 v7, 1, v1"); e("v_add_u32 v6, v6, v7"); e(f"v_add_u32 v6, s{T4}, v6")
        e("v_mul_u32_u24 v6, 9363, v6"); e("v_lshrrev_b32 v6, 16, v6"); e("v_lshlrev_b32 v6, 6, v6")
        e(f"s_lshl_b32 s{T4}, s{sN3}, 1"); e(f"v_cmp_gt_u32 vcc, s{T4}, v1"); e(f"v_mov_b32 v7, {BIG}"); e("s_nop 0"); e("v_cndmask_b32 v232, v7, v6, vcc")
    def wp_poll_issue(dst):
        e(f"s_mov_b32 s{T0}, {FL2_OFF}"); e(f"buffer_load_dword v{dst}, v232, s[{WS}:{WS+3}], s{T0} offen sc1")
    def wp_poll_check(dst):
        lo, lk = e.newlabel('wpl'), e.newlabel('wpk')
        e(f"s_mov_b32 s{T1}, 0x40000"); e(f"s_lshl_b32 s{T2}, s{sN3}, 1")
        e.label(lo)
        e(f"v_cmp_gt_u32 s[{sEX}:{sEX+1}], s{T2}, v1"); e(f"v_cmp_ne_u32 vcc, 1, v{dst}"); e(f"s_and_b64 vcc, vcc, s[{sEX}:{sEX+1}]")
        e(f"s_cbranch_vccz {lk}")
        wp_poll_issue(dst); e("s_waitcnt vmcnt(0)")
        e(f"s_sub_u32 s{T1}, s{T1}, 1"); e(f"s_cmp_lg_u32 s{T1}, 0"); e(f"s_cbranch_scc1 {lo}")
        e.label(lk)
    def w_load(t, vm_=None):
        b = WB3 + 20 * (t % PW); vo = 5 if t == 9 else 4
        e(f"s_add_u32 s{sIW}, s{sIDX}, {t}"); e(f"s_sub_u32 s{sSO}, s{sIW}, s{sN3}"); e(f"s_cmp_ge_u32 s{sIW}, s{sN3}"); e(f"s_cselect_b32 s{sIW}, s{sSO}, s{sIW}")
        e(f"s_mul_i32 s{sSO}, s{sIW}, 5120"); e(f"s_add_u32 s{sSO}, s{sSO}, s{sWP}"); e(f"s_add_u32 s{sSO4}, s{sSO}, 4096")
        for q in range(5):
            if q < 4: e(f"buffer_load_dwordx4 v[{b+4*q}:{b+4*q+3}], v{vo}, s[{WS}:{WS+3}], s{sSO} offen offset:{q*1024} sc1")
            else: e(f"buffer_load_dwordx4 v[{b+4*q}:{b+4*q+3}], v{vo}, s[{WS}:{WS+3}], s{sSO4} offen sc1")
            if vm_: vm_.issue(f'w{t}')
    def w_pref(t0, t1):
        e("v_lshlrev_b32 v4, 4, v1")
        for t in range(t0, t1): w_load(t)

    vKA, vVA, vOW, vOS = 240, 241, 242, 243
    sOS = 71
    def attn_addr():
        e(f"s_and_b32 s{T0}, s{sWAVE}, 3"); e(f"s_lshr_b32 s{T1}, s{sWAVE}, 2")
        e(f"s_mul_i32 s{T2}, s{T1}, {64*PQ}"); e(f"s_mul_i32 s{T3}, s{T0}, 40"); e(f"s_add_u32 s{T2}, s{T2}, s{T3}")
        e(f"s_add_u32 s{T2}, s{T2}, {QB - 8*PQ}")
        e(f"v_mul_u32_u24 v{vKA}, {PQ}, v1"); e(f"v_add_u32 v{vKA}, s{T2}, v{vKA}")
        e("v_and_b32 v9, 48, v1"); e("v_and_b32 v10, 3, v1"); e("v_lshl_add_u32 v9, v10, 2, v9")
        e("v_bfe_u32 v10, v1, 2, 2"); e("v_add_u32 v9, v9, v10")
        e(f"v_mul_u32_u24 v{vVA}, {PQ}, v9"); e(f"v_add_u32 v{vVA}, s{T2}, v{vVA}")
        e(f"s_mul_i32 s{T2}, s{T1}, {64*PO}"); e(f"s_add_u32 s{T2}, s{T2}, s{T3}"); e(f"s_add_u32 s{T2}, s{T2}, {OB}")
        e(f"v_mul_u32_u24 v{vOW}, {PO}, v1"); e(f"v_add_u32 v{vOW}, s{T2}, v{vOW}")
        for r in range(3):
            e(f"s_add_u32 s{T0}, s{sWAVE}, {8*r}"); e(f"s_lshr_b32 s{T1}, s{T0}, 1"); e(f"s_and_b32 s{T0}, s{T0}, 1")
            e(f"s_lshl_b32 s{T2}, s{T0}, 6")
            e(f"v_add_u32 v9, s{T2}, v1")
            e("v_add_u32 v10, 14, v9")
            e("v_and_b32 v11, 1, v10"); e("v_lshrrev_b32 v12, 1, v10"); e("v_lshl_add_u32 v11, v11, 6, v12")
            e("v_min_u32 v11, 127, v11")
            e(f"v_mul_u32_u24 v11, {PO}, v11"); e(f"s_lshl_b32 s{T3}, s{T1}, 4"); e(f"s_add_u32 s{T3}, s{T3}, {OB}")
            e(f"v_add_u32 v{vOS+2*r}, s{T3}, v11")
            e(f"s_add_u32 s{T3}, s{sT0}, 14"); e(f"v_add_u32 v12, s{T3}, v9")
            e(f"s_mul_i32 s{T4}, s{sCG}, 10"); e(f"s_add_u32 s{T4}, s{T4}, s{T1}")
            e(f"s_lshr_b32 s{T5}, s{T4}, 2"); e(f"s_and_b32 s{T4}, s{T4}, 3")
            e(f"s_lshl_b32 s{T5}, s{T5}, 12"); e(f"s_lshl_b32 s{T4}, s{T4}, 8"); e(f"s_add_u32 s{T5}, s{T5}, s{T4}"); e(f"s_add_u32 s{sOS+r}, s{T5}, {OP_OFF}")
            e("v_lshrrev_b32 v13, 6, v12"); e(f"v_mul_u32_u24 v13, {20*4096}, v13")
            e("v_bfe_u32 v14, v12, 4, 2"); e("v_lshl_add_u32 v13, v14, 10, v13")
            e("v_and_b32 v14, 15, v12"); e("v_lshl_add_u32 v13, v14, 4, v13")
            e(f"v_cmp_gt_u32 vcc, 114, v9"); e(f"s_mov_b64 s[{sM}:{sM+1}], vcc"); e(f"v_cmp_gt_u32 vcc, 2048, v12"); e(f"s_and_b64 vcc, vcc, s[{sM}:{sM+1}]")
            e(f"v_mov_b32 v14, {BIG}"); e("s_nop 1"); e(f"v_cndmask_b32 v{vOS+2*r+1}, v14, v13, vcc")

    prologue('c')
    vX, vE, vO, vX1 = 2, 3, 4, 5
    ACC = 8
    XB = [136, 152]; WB = [168, 200]
    e(f"s_lshr_b32 s{sMH}, s{sWAVE}, 1"); e(f"s_and_b32 s{sNH}, s{sWAVE}, 1")
    e(f"s_cmp_eq_u32 s2, 0"); e("s_cbranch_scc0 L_noclear")
    e(f"s_cmp_eq_u32 s{sWAVE}, 0"); e("s_cbranch_scc0 L_noclear")
    e("v_lshlrev_b32 v8, 6, v1"); e("v_mov_b32 v9, 0")
    for k in range(6):
        e(f"s_mov_b32 s{T0}, {FL_OFF + k*4096}")
        e(f"buffer_store_dword v9, v8, s[{WS}:{WS+3}], s{T0} offen sc1")
    e("s_waitcnt vmcnt(0)")
    e("v_mov_b32 v9, 1"); e("v_mov_b32 v8, 0")
    e(f"s_mov_b64 s[{sEX}:{sEX+1}], exec"); e("s_mov_b64 exec, 1")
    e(f"buffer_store_dword v9, v8, s[{DBG}:{DBG+3}], 0 offen sc1")
    e(f"s_mov_b64 exec, s[{sEX}:{sEX+1}]")
    e.label("L_noclear")
    e(f"s_mov_b32 s{M1}, s18"); e(f"s_and_b32 s{M1+1}, s19, 0xffff")
    e(f"s_cmp_eq_u32 s{sISA}, 1"); e(f"s_cselect_b32 s{M1+2}, 0, 3456"); e(f"s_mov_b32 s{M1+3}, 0x20000")
    e("v_lshrrev_b32 v7, 4, v1")
    e("v_lshlrev_b32 v232, 3, v7")
    e(f"s_lshl_b32 s{T0}, s{sCG}, 9"); e(f"s_lshl_b32 s{T1}, s{sNH}, 8"); e(f"s_add_u32 s{T0}, s{T0}, s{T1}")
    e(f"v_add_u32 v232, s{T0}, v232")
    for nt in range(8):
        e(f"buffer_load_dwordx2 v[{XB[0]+2*nt}:{XB[0]+2*nt+1}], v232, s[{M1}:{M1+3}], 0 offen offset:{nt*32}")
    if o['bari']: e("s_barrier")
    e("v_and_b32 v233, 15, v1")
    e("v_bfe_u32 v234, v233, 1, 3")
    e("v_xor_b32 v234, v7, v234")
    e("v_lshlrev_b32 v234, 4, v234")
    e(f"v_lshl_add_u32 v{vX}, v233, 7, v234")
    e(f"s_lshl_b32 s{T0}, s{sMH}, 13")
    e(f"v_add_u32 v{vX}, s{T0}, v{vX}")
    e(f"v_xor_b32 v{vX1}, 64, v{vX}")
    e("v_lshrrev_b32 v233, 2, v1"); e("v_and_b32 v233, 3, v233")
    e("v_lshl_add_u32 v233, v7, 3, v233")
    e("v_and_b32 v234, 3, v1"); e("v_lshlrev_b32 v234, 3, v234")
    e("v_lshl_add_u32 v235, v233, 6, v234")
    e(f"s_lshl_b32 s{T0}, s{sNH}, 13"); e(f"s_add_u32 s{T0}, s{T0}, {WBASE}")
    e(f"v_add_u32 v235, s{T0}, v235")
    e("v_and_b32 v236, 1, v7"); e("v_lshlrev_b32 v236, 5, v236")
    e(f"v_add_u32 v{vE}, v235, v236")
    e("v_xor_b32 v236, 32, v236")
    e(f"v_add_u32 v{vO}, v235, v236")
    p3_params()
    attn_addr()
    e("v_and_b32 v233, 15, v1"); e("v_lshrrev_b32 v7, 4, v1")
    e(f"s_lshl_b32 s{T0}, s{sMH}, 6")
    e(f"v_add_u32 v233, s{T0}, v233")
    e(f"v_mul_u32_u24 v234, {PQ}, v233")
    e("v_lshl_add_u32 v234, v7, 3, v234")
    e(f"v_add_u32 v234, {QB}, v234")
    e(f"s_lshl_b32 s{T0}, s{sODD}, 5"); e(f"v_add_u32 v235, s{T0}, v234")
    e(f"s_lshl_b32 s{T0}, s{sODD}, 7"); e(f"v_subrev_u32 v236, s{T0}, v234")
    e("s_waitcnt vmcnt(0)")
    for nt in range(8):
        a = ACC + nt * 16
        s0 = XB[0] + 2 * nt
        e(f"v_lshlrev_b32 v{a}, 16, v{s0}"); e(f"v_and_b32 v{a+1}, 0xffff0000, v{s0}")
        e(f"v_lshlrev_b32 v{a+2}, 16, v{s0+1}"); e(f"v_and_b32 v{a+3}, 0xffff0000, v{s0+1}")
        for mt in range(1, 4):
            for r in range(4): e(f"v_mov_b32 v{a+4*mt+r}, v{a+r}")
    def reads(st):
        buf = st & 1
        L = []
        for mt in range(4): L.append(f"ds_read_b128 v[{XB[buf]+4*mt}:{XB[buf]+4*mt+3}], v{vX if buf == 0 else vX1} offset:{((st >> 1) & 1) * XU + mt*2048}")
        for nt in range(8):
            for h in range(2):
                d = WB[buf] + 4 * nt + 2 * h
                L.append(f"ds_read_b64_tr_b16 v[{d}:{d+1}], v{vE if nt % 2 == 0 else vO} offset:{(st & 3) * 16384 + (nt>>1)*2048 + h*256}")
        return L
    if o['touch']: e("s_barrier")
    e("s_barrier")
    stamp(1)
    for r in reads(0): e(r)
    e("s_waitcnt lgkmcnt(0)")
    e("s_barrier")
    e(f"s_mov_b32 s{sIT}, 4")
    if o['prio']: e("s_setprio 1")
    def step(q, rd, ctl, bar):
        half = q & 1
        fill = []
        if q == 3 and rd: fill += [f"v_xor_b32 v{vX}, 0x8000, v{vX}", f"v_xor_b32 v{vX1}, 0x8000, v{vX1}"]
        if rd: fill += reads(q + 1)
        for m in range(32):
            nt, mt = m // 4, m % 4
            a = ACC + (nt * 4 + mt) * 4
            e(f"v_mfma_f32_16x16x32_bf16 v[{a}:{a+3}], v[{WB[half]+4*nt}:{WB[half]+4*nt+3}], v[{XB[half]+4*mt}:{XB[half]+4*mt+3}], v[{a}:{a+3}]")
            if fill: e(fill.pop(0))
            if ctl and m == 28: e(f"s_sub_u32 s{sIT}, s{sIT}, 1")
            if ctl and m == 29: e(f"s_cmp_lg_u32 s{sIT}, 0")
        assert not fill
        if rd: e("s_waitcnt lgkmcnt(0)")
        if bar: e("s_barrier")
    e(".p2align 3")
    e.label("L_main")
    for q in range(4): step(q, True, q == 3, True)
    e("s_cbranch_scc1 L_main")
    step(0, True, False, True)
    step(1, True, False, True)
    step(2, True, False, False)
    step(3, False, False, False)
    if o['prio']: e("s_setprio 0")
    stamp(2)
    e("v_mov_b32 v7, 0"); e("v_lshlrev_b32 v4, 4, v1")
    e(f"buffer_load_dword v254, v7, s[{DBG}:{DBG+3}], 0 offen sc1")
    wp_poll_issue(255)
    e(f"s_cmp_eq_u32 s{sISA}, 1"); e("s_cbranch_scc1 L_epiA")

    e(f"s_lshl_b32 s{T0}, s{sRB}, 1"); e(f"s_add_u32 s{T0}, s{T0}, s{sMH}"); e(f"s_mul_i32 s{T0}, s{T0}, 54")
    e(f"s_lshl_b32 s{T1}, s{sCG}, 3"); e(f"s_lshl_b32 s{T2}, s{sNH}, 2"); e(f"s_add_u32 s{T1}, s{T1}, s{T2}")
    e(f"s_add_u32 s{T0}, s{T0}, s{T1}"); e(f"s_lshl_b32 s{T0}, s{T0}, 12")
    if HP_OFF: e(f"s_add_u32 s{T0}, s{T0}, {HP_OFF}")
    e(f"s_mov_b32 s{T7}, s{T1}")
    for up in range(4):
        if up == 2:
            e(f"s_cmp_ge_u32 s{T7}, 52"); e("s_cbranch_scc1 L_epiB_short")
        for mt in range(4):
            d = 236 + 4 * ((up * 4 + mt) % 4)
            for tt in range(2):
                a = ACC + ((2 * up + tt) * 4 + mt) * 4
                for r in range(4): e(f"v_max_f32 v{a+r}, 0, v{a+r}")
                e(f"v_pk_mul_f32 v[{a}:{a+1}], v[{a}:{a+1}], v[{a}:{a+1}]")
                e(f"v_pk_mul_f32 v[{a+2}:{a+3}], v[{a+2}:{a+3}], v[{a+2}:{a+3}]")
                e(f"v_cvt_pk_bf16_f32 v{d+2*tt}, v{a}, v{a+1}")
                e(f"v_cvt_pk_bf16_f32 v{d+2*tt+1}, v{a+2}, v{a+3}")
            e(f"buffer_store_dwordx4 v[{d}:{d+3}], v4, s[{WS}:{WS+3}], s{T0} offen offset:{mt*1024} sc1")
        e(f"s_add_u32 s{T0}, s{T0}, 4096")
    e.label("L_epiB_short")
    e.label("L_epiB_done")
    stamp(9)
    e("s_branch L_cw_pref")

    e.label("L_epiA")
    colE = [0, 32, 64, 96, 160, 192, 224, 256, 320, 352, 384, 416, 128, 288, 448]
    e(f"s_cmp_eq_u32 s{sNH}, 1"); e("s_cbranch_scc1 L_epiA_n1")
    def qkv_write(nh):
        for nt in range(8):
            tile = 8 * nh + nt
            if tile == 15: continue
            for mt in range(4):
                a = ACC + (nt * 4 + mt) * 4
                d = 250 + 2 * ((nt * 4 + mt) % 2)
                e(f"v_cvt_pk_bf16_f32 v{d}, v{a}, v{a+1}"); e(f"v_cvt_pk_bf16_f32 v{d+1}, v{a+2}, v{a+3}")
                e(f"ds_write_b64 v{235 if tile < 12 else 236}, v[{d}:{d+1}] offset:{colE[tile] + mt*16*PQ}")
    qkv_write(0)
    e("s_branch L_epiA_w")
    e.label("L_epiA_n1")
    qkv_write(1)
    e(f"s_cmp_eq_u32 s{sCG}, 0"); e("s_cbranch_scc0 L_epiA_w")
    for mt in range(4):
        a = ACC + (7 * 4 + mt) * 4
        e(f"v_cvt_pk_bf16_f32 v12, v{a}, v{a}"); e("v_lshlrev_b32 v12, 16, v12")
        e("v_mul_f32 v12, 0xbfb8aa3b, v12")
        e("v_exp_f32 v12, v12"); e("v_add_f32 v12, 1.0, v12"); e("v_rcp_f32 v12, v12")
        e("v_cvt_pk_bf16_f32 v12, v12, v12"); e(f"v_lshlrev_b32 v{8+mt}, 16, v12")
    e("v_and_b32 v233, 15, v1")
    for mt in range(4):
        e(f"v_add_u32 v12, {16*mt}, v233")
        e("v_lshlrev_b32 v13, 1, v12"); e(f"s_add_u32 s{T0}, s{sT0}, s{sMH}"); e(f"v_add_u32 v13, s{T0}, v13")
        e("v_lshlrev_b32 v14, 2, v13")
        e(f"v_cmp_le_u32 s[{sM}:{sM+1}], 7, v12"); e(f"v_cmp_gt_u32 s[{sM+2}:{sM+3}], 16, v1"); e(f"v_cmp_gt_u32 vcc, 2048, v13")
        e(f"s_and_b64 s[{sM}:{sM+1}], s[{sM}:{sM+1}], s[{sM+2}:{sM+3}]"); e(f"s_and_b64 vcc, vcc, s[{sM}:{sM+1}]")
        e(f"v_mov_b32 v15, {BIG}"); e("s_nop 1"); e("v_cndmask_b32 v14, v15, v14, vcc")
        e(f"s_mov_b32 s{T1}, {G_OFF}")
        e(f"buffer_store_dword v{8+mt}, v14, s[{WS}:{WS+3}], s{T1} offen sc1")
    e.label("L_epiA_w")
    e("s_waitcnt lgkmcnt(0)")
    e.label("L_attn")
    e("s_barrier")
    stamp(3)
    Q = 16; K = 28; V = 60; S = 92; O = 104
    for s_ in range(5): e(f"ds_read_b64 v[{Q+2*s_}:{Q+2*s_+1}], v{vKA} offset:{8*PQ + 8*s_}")
    for kb in range(3):
        for s_ in range(5): e(f"ds_read_b64 v[{K+10*kb+2*s_}:{K+10*kb+2*s_+1}], v{vKA} offset:{4*kb*PQ + 160 + 8*s_}")
    for kb in range(3):
        for dg in range(5): e(f"ds_read_b64_tr_b16 v[{V+10*kb+2*dg}:{V+10*kb+2*dg+1}], v{vVA} offset:{4*kb*PQ + 320 + 8*dg}")
    def sprinkle(t):
        if not o['spr']: return
        lab = e.newlabel('sp')
        e(f"s_cmp_lt_u32 s{sWAVE}, 4"); e(f"s_cbranch_scc0 {lab}")
        if t == 0:
            e("s_waitcnt vmcnt(0)")
            wp_poll_check(255)
        w_load(t)
        e.label(lab)
    e("v_lshlrev_b32 v4, 4, v1")
    sprinkle(0)
    for r in range(12): e(f"v_mov_b32 v{S+r}, 0")
    for r in range(20): e(f"v_mov_b32 v{O+r}, 0")
    e("v_and_b32 v9, 3, v1")
    e(f"v_cmp_eq_u32 s[{sM}:{sM+1}], 0, v9"); e(f"v_cmp_ge_u32 s[{sM+2}:{sM+3}], 1, v9"); e(f"v_cmp_ge_u32 s[{sM+4}:{sM+5}], 2, v9")
    e("s_waitcnt lgkmcnt(15)")
    stamp(9)
    for s_ in range(5):
        for kb in range(3):
            e(f"v_mfma_f32_4x4x4_16b_bf16 v[{S+4*kb}:{S+4*kb+3}], v[{K+10*kb+2*s_}:{K+10*kb+2*s_+1}], v[{Q+2*s_}:{Q+2*s_+1}], v[{S+4*kb}:{S+4*kb+3}]")
    sprinkle(1)
    Y = 124
    e(f"v_cndmask_b32 v{Y}, v{S+9}, v{S+1}, s[{sM}:{sM+1}]")
    e(f"v_cndmask_b32 v{Y+1}, v{S+10}, v{S+2}, s[{sM+2}:{sM+3}]")
    e(f"v_cndmask_b32 v{Y+2}, v{S+11}, v{S+3}, s[{sM+4}:{sM+5}]")
    ys = [Y, Y+1, Y+2, S+4, S+5, S+6, S+7, S+8]
    e(f"s_cmp_eq_u32 s{sRB}, 0"); e("s_cbranch_scc0 L_nomask")
    e("v_and_b32 v9, 60, v1"); e("v_sub_u32 v9, 15, v9")
    e(f"v_mov_b32 v10, 0xf149f2ca")
    for n, reg in ((4, S+4), (5, S+5), (6, S+6), (7, S+7), (8, S+8)):
        e(f"v_cmp_lt_i32 vcc, {n}, v9"); e(f"v_cndmask_b32 v{reg}, v{reg}, v10, vcc")
    for n, reg, m in ((1, Y, sM), (2, Y+1, sM+2), (3, Y+2, sM+4)):
        e(f"v_mov_b32 v11, {n+8}"); e(f"v_cndmask_b32 v11, v11, {n}, s[{m}:{m+1}]")
        e(f"v_cmp_lt_i32 vcc, v11, v9"); e(f"v_cndmask_b32 v{reg}, v{reg}, v10, vcc")
    e.label("L_nomask")
    e(f"v_max3_f32 v9, v{ys[0]}, v{ys[1]}, v{ys[2]}"); e(f"v_max3_f32 v10, v{ys[3]}, v{ys[4]}, v{ys[5]}")
    e(f"v_max3_f32 v9, v9, v{ys[6]}, v{ys[7]}"); e("v_max_f32 v9, v9, v10")
    CS = 0.22360679774997896 * 1.4426950408889634
    import struct
    csb = struct.unpack('<I', struct.pack('<f', CS))[0]
    e(f"s_mov_b32 s{T4}, {csb}")
    e(f"v_mul_f32 v9, s{T4}, v9")
    for y in ys: e(f"v_fma_f32 v{y}, v{y}, s{T4}, -v9")
    for y in ys: e(f"v_exp_f32 v{y}, v{y}")
    e(f"v_add_f32 v9, v{ys[0]}, v{ys[1]}"); e(f"v_add_f32 v10, v{ys[2]}, v{ys[3]}")
    e(f"v_add_f32 v11, v{ys[4]}, v{ys[5]}"); e(f"v_add_f32 v12, v{ys[6]}, v{ys[7]}")
    e("v_add_f32 v9, v9, v10"); e("v_add_f32 v11, v11, v12"); e("v_add_f32 v9, v9, v11")
    e("v_rcp_f32 v9, v9")
    for y in ys: e(f"v_mul_f32 v{y}, v{y}, v9")
    P = 128
    e(f"v_cndmask_b32 v{S+1}, 0, v{Y}, s[{sM}:{sM+1}]"); e(f"v_cndmask_b32 v{S+9}, v{Y}, 0, s[{sM}:{sM+1}]")
    e(f"v_cndmask_b32 v{S+2}, 0, v{Y+1}, s[{sM+2}:{sM+3}]"); e(f"v_cndmask_b32 v{S+10}, v{Y+1}, 0, s[{sM+2}:{sM+3}]")
    e(f"v_cndmask_b32 v{S+3}, 0, v{Y+2}, s[{sM+4}:{sM+5}]"); e(f"v_cndmask_b32 v{S+11}, v{Y+2}, 0, s[{sM+4}:{sM+5}]")
    e(f"v_mov_b32 v{S}, 0")
    for kb in range(3):
        e(f"v_cvt_pk_bf16_f32 v{P+2*kb}, v{S+4*kb}, v{S+4*kb+1}"); e(f"v_cvt_pk_bf16_f32 v{P+2*kb+1}, v{S+4*kb+2}, v{S+4*kb+3}")
    sprinkle(2)
    e("s_waitcnt lgkmcnt(0)")
    stamp(10)
    for kb in range(3):
        for dg in range(5):
            e(f"v_mfma_f32_4x4x4_16b_bf16 v[{O+4*dg}:{O+4*dg+3}], v[{V+10*kb+2*dg}:{V+10*kb+2*dg+1}], v[{P+2*kb}:{P+2*kb+1}], v[{O+4*dg}:{O+4*dg+3}]")
    for dg in range(5):
        e(f"v_cvt_pk_bf16_f32 v{Q+2*dg}, v{O+4*dg}, v{O+4*dg+1}"); e(f"v_cvt_pk_bf16_f32 v{Q+2*dg+1}, v{O+4*dg+2}, v{O+4*dg+3}")
        e(f"ds_write_b64 v{vOW}, v[{Q+2*dg}:{Q+2*dg+1}] offset:{8*dg}")
    sprinkle(3)
    e("s_waitcnt lgkmcnt(0)")
    e("s_barrier")
    stamp(14)
    e(f"ds_read_b128 v[8:11], v{vOS}"); e(f"ds_read_b128 v[12:15], v{vOS+2}"); e(f"ds_read_b128 v[16:19], v{vOS+4}")
    e("s_waitcnt lgkmcnt(2)"); e(f"buffer_store_dwordx4 v[8:11], v{vOS+1}, s[{WS}:{WS+3}], s{sOS} offen sc1")
    e("s_waitcnt lgkmcnt(1)"); e(f"buffer_store_dwordx4 v[12:15], v{vOS+3}, s[{WS}:{WS+3}], s{sOS+1} offen sc1")
    e(f"s_cmp_ge_u32 s{sWAVE}, 4"); e("s_cbranch_scc1 L_ostore_done")
    e("s_waitcnt lgkmcnt(0)"); e(f"buffer_store_dwordx4 v[16:19], v{vOS+5}, s[{WS}:{WS+3}], s{sOS+2} offen sc1")
    e.label("L_ostore_done")
    stamp(12)
    e(f"s_cmp_ge_u32 s{sWAVE}, 4"); e("s_cbranch_scc0 L_cw_pref")
    e("s_waitcnt vmcnt(0)")
    e("s_branch L_bar3")
    e.label("L_cw_pref")
    e(f"s_waitcnt vmcnt(0)")
    stamp(13)
    e(f"v_readfirstlane_b32 s{sCHK}, v254")
    e.label("L_bar3")
    e("s_barrier")
    stamp(4)
    e(f"s_cmp_eq_u32 s{sWAVE}, 0"); e("s_cbranch_scc0 L_flag_done")
    e(f"s_cmp_eq_u32 s{sCHK}, 1"); e("s_cbranch_scc1 L_chk_ok")
    e(f"s_mov_b32 s{T0}, 0x40000")
    e.label("L_chk")
    e("v_mov_b32 v2, 0")
    e(f"buffer_load_dword v3, v2, s[{DBG}:{DBG+3}], 0 offen sc1"); e("s_waitcnt vmcnt(0)")
    e(f"v_cmp_eq_u32 vcc, 1, v3"); e("s_cbranch_vccnz L_chk_ok")
    e(f"s_sub_u32 s{T0}, s{T0}, 1"); e(f"s_cmp_lg_u32 s{T0}, 0"); e("s_cbranch_scc1 L_chk")
    e.label("L_chk_ok")
    e(f"s_lshl_b32 s{T0}, s{sFLAG}, 6"); e(f"s_add_u32 s{T0}, s{T0}, {FL_OFF}")
    e("v_mov_b32 v2, 0"); e("v_mov_b32 v3, 1")
    e(f"s_mov_b64 s[{sEX}:{sEX+1}], exec"); e("s_mov_b64 exec, 1")
    e(f"buffer_store_dword v3, v2, s[{WS}:{WS+3}], s{T0} offen sc1")
    e(f"s_mov_b64 exec, s[{sEX}:{sEX+1}]")
    e.label("L_flag_done")
    lwc = e.newlabel('nowp'); e(f"s_cmp_lt_u32 s{sWAVE}, 4"); e(f"s_cbranch_scc0 {lwc}")
    wp_poll_check(255)
    e.label(lwc)
    if o['stop'] == 'p1':
        e("s_branch L_fin")
    else:
        e("s_branch L_phase3")

    def loader_tail():
        stamp(2)
        e("s_waitcnt vmcnt(0)")
        wp_poll_check(2)
        EA, EB = o['ea'], o['eb']
        lb_ = e.newlabel('eb')
        w_pref(0, min(EA, EB))
        if EA != EB:
            e(f"s_cmp_eq_u32 s{sISA}, {1 if EA > EB else 0}"); e(f"s_cbranch_scc0 {lb_}")
            w_pref(min(EA, EB), max(EA, EB))
            e.label(lb_)
        if o['steps']:
            e(f"s_lshl_b32 s{T0}, s2, 3"); e(f"s_add_u32 s{T0}, s{T0}, s{sWAVE}"); e(f"s_lshl_b32 s{T0}, s{T0}, 8"); e(f"s_add_u32 s{T0}, s{T0}, {TS_OFF + 0x40000}")
            e("v_lshlrev_b32 v249, 2, v1"); e("s_mov_b64 exec, 0xffffffff")
            e(f"buffer_store_dword v250, v249, s[{WS}:{WS+3}], s{T0} offen")
            e(f"buffer_store_dword v251, v249, s[{WS}:{WS+3}], s{T0} offen offset:128")
            e("s_mov_b64 exec, -1")
        e(f"s_cmp_eq_u32 s{sISA}, 1"); e("s_cbranch_scc1 L_attn")
        e("s_branch L_bar3")
    def loader_early(j, vm):
        if j == 16:
            p3_params(); wp_poll_issue(2); vm.issue('wpp'); attn_addr()

    e.label("L_ldx")
    prologue('x')
    vm = VM(e)
    VX = 8
    e("v_lshrrev_b32 v2, 3, v1")
    e("v_and_b32 v3, 7, v1"); e("v_lshrrev_b32 v4, 1, v2"); e("v_xor_b32 v3, v3, v4"); e("v_lshlrev_b32 v3, 4, v3")
    e("v_xor_b32 v4, 64, v3")
    e(f"v_lshlrev_b32 v2, s{sISA}, v2")
    e(f"s_lshl_b32 s{T0}, s{sRB}, 7"); e(f"s_cmp_eq_u32 s{sISA}, 1"); e(f"s_cselect_b32 s{T0}, s{sT0}, s{T0}")
    e(f"s_lshl_b32 s{T1}, 8, s{sISA}")
    e(f"s_movk_i32 s{T3}, 2047"); e(f"s_movk_i32 s{T4}, 1280"); e(f"s_lshl_b32 s{sKX}, s{sROT}, 7")
    def xadv():
        e(f"s_add_u32 s{sKX}, s{sKX}, 128"); e(f"s_cmp_eq_u32 s{sKX}, s{T4}"); e(f"s_cselect_b32 s{sKX}, 0, s{sKX}")
    def xissue(u, n):
        e(f"s_mov_b32 m0, {(u % NX) * XU + n * 1024}")
        e(f"buffer_load_dwordx4 v{VX+n}, s[{X}:{X+3}], s{sKX} offen lds"); vm.issue(f'x{u}')
    for n in range(16):
        if n == 8:
            e(f"s_add_u32 s{T2}, s{sT0}, 1"); e(f"s_cmp_eq_u32 s{sISA}, 1"); e(f"s_cselect_b32 s{T0}, s{T2}, s{T0}")
        e(f"v_add_u32 v5, s{T0}, v2"); e(f"s_add_u32 s{T0}, s{T0}, s{T1}")
        e(f"v_med3_i32 v5, v5, 0, s{T3}")
        e(f"v_mad_u32_u24 v{VX+n}, v5, s{T4}, v{3 + (n & 1)}")
        if not o['touch']: xissue(0, n)
    if o['touch']:
        e("s_barrier")
        for n in range(16): xissue(0, n)
    stamp(11)
    if o['bari']: e("s_barrier")
    xadv()
    for n in range(16): xissue(1, n)
    stamp(1)
    vm.wait('x0')
    e("s_barrier")
    xadv()
    for n in range(16): xissue(2, n)
    e("s_barrier")
    for j in range(18):
        u = (j + 6) // 2; hf = (j + 6) % 2
        if u < 10:
            if hf == 0: xadv()
            for n in range(8 * hf, 8 * hf + 8): xissue(u, n)
        if (j + 2) % 2 == 0 and (j + 2) // 2 < 10: vm.wait(f'x{(j+2)//2}')
        loader_early(j, vm)
        stepbar(j)
    loader_tail()

    for a_ in range(2):
        e.label(f"L_ldw{a_}")
        prologue(f'w{a_}')
        vm = VM(e)
        VW = 8
        e("v_lshrrev_b32 v2, 2, v1"); e(f"v_mul_lo_u32 v2, v2, s{sPITCH}")
        e("v_and_b32 v3, 1, v1"); e("v_lshl_add_u32 v2, v3, 4, v2")
        e("v_lshrrev_b32 v3, 1, v1"); e("v_lshrrev_b32 v4, 5, v1"); e("v_xor_b32 v3, v3, v4"); e("v_and_b32 v3, 1, v3")
        e("v_cmp_eq_u32 vcc, 1, v3")
        e(f"s_mul_i32 s{T4}, s{sCG}, 160"); e(f"s_lshl_b32 s{T5}, s{sODD}, 5"); e(f"s_add_u32 s{T5}, s{T5}, s{T4}")
        e(f"s_lshl_b32 s{T6}, s{sCG}, 9")
        e(f"s_lshl_b32 s{T7}, s{sPITCH}, 5"); e(f"s_mul_i32 s{sKW0}, s{T7}, s{sROT}"); e(f"s_lshl_b32 s{sKW0}, s{sKW0}, 1")
        e(f"s_lshl_b32 s{sKWH}, s{sPITCH}, 4"); e(f"s_add_u32 s{sKW1}, s{sKW0}, s{sKWH}"); e(f"s_mul_i32 s{sKWE}, s{T7}, 20")
        for pp in range(4):
            P = 4 * a_ + pp
            e(f"s_add_u32 s{T0}, s{T6}, {64*P}"); e(f"s_add_u32 s{T1}, s{T0}, 32")
            if P >= 6:
                e(f"s_cmp_ge_u32 s{T0}, 3456"); e(f"s_cselect_b32 s{T0}, {BIG}, s{T0}"); e(f"s_cselect_b32 s{T1}, {BIG}, s{T1}")
            if P < 6:
                e(f"s_add_u32 s{T2}, s{T5}, {1280*(P>>1) + 64*(P&1)}"); e(f"s_add_u32 s{T3}, s{T2}, 32")
            else:
                e(f"s_cmp_eq_u32 s{sODD}, 1"); e(f"s_cselect_b32 s{T2}, 0, 128") if False else None
                e(f"s_lshl_b32 s{T2}, s{sODD}, 7"); e(f"s_sub_u32 s{T2}, s{T4}, s{T2}"); e(f"s_add_u32 s{T2}, s{T2}, {128 + (2560 if P == 7 else 0)}")
                if P == 6: e(f"s_add_u32 s{T3}, s{T2}, 1280")
                else: e(f"s_mov_b32 s{T3}, {BIG}")
            e(f"s_cmp_eq_u32 s{sISA}, 1"); e(f"s_cselect_b32 s{T0}, s{T2}, s{T0}"); e(f"s_cselect_b32 s{T1}, s{T3}, s{T1}")
            e(f"v_mov_b32 v4, s{T0}"); e(f"v_mov_b32 v5, s{T1}")
            e(f"v_cndmask_b32 v4, v4, v5, vcc"); e(f"v_add_u32 v{VW+pp}, v4, v2")
        def wstage(j):
            for hf in range(2):
                for pp in range(4):
                    gatehalf = (a_ == 1 and pp == 3)
                    if gatehalf: e(f"s_mov_b64 exec, s[{sM}:{sM+1}]")
                    e(f"s_mov_b32 m0, {WBASE + (j % NW) * 16384 + (4*a_ + pp) * 2048 + hf * 1024}")
                    e(f"buffer_load_dwordx4 v{VW+pp}, s[{W}:{W+3}], s{sKW1 if hf else sKW0} offen lds"); vm.issue(f'st{j}')
                    if gatehalf: e("s_mov_b64 exec, -1")
            e(f"s_add_u32 s{sKW0}, s{sKW0}, s{T7}"); e(f"s_cmp_eq_u32 s{sKW0}, s{sKWE}"); e(f"s_cselect_b32 s{sKW0}, 0, s{sKW0}")
            e(f"s_add_u32 s{sKW1}, s{sKW0}, s{sKWH}")
        if a_ == 1:
            e(f"s_mov_b64 s[{sM}:{sM+1}], -1")
            e(f"s_cmp_eq_u32 s{sISA}, 1"); lab = e.newlabel('ng'); e(f"s_cbranch_scc0 {lab}")
            e(f"s_not_b64 s[{sM}:{sM+1}], vcc")
            e.label(lab)
        if o['touch']: e("s_barrier")
        wstage(0)
        if a_ == 0: stamp(11)
        if o['bari']: e("s_barrier")
        wstage(1)
        if a_ == 0: stamp(1)
        vm.wait('st0')
        e("s_barrier")
        wstage(2); wstage(3)
        vm.wait('st1')
        e("s_barrier")
        for j in range(18):
            if j + 4 < 20: wstage(j + 4)
            if j + 2 < 20: vm.wait(f'st{j+2}')
            loader_early(j, vm)
            stepbar(j)
        loader_tail()

    e.label("L_helper")
    if o['ctouch']:
        e(f"s_getpc_b64 s[{T0}:{T0+1}]")
        e.label("L_pc")
        e(f"s_sub_u32 s{T0}, s{T0}, L_pc-{KNAME}"); e(f"s_subb_u32 s{T0+1}, s{T0+1}, 0")
        e(f"s_lshr_b32 s{T2}, s2, 3"); e(f"s_mul_i32 s{T2}, s{T2}, {o['nl']}")
        e(f"v_add_u32 v4, s{T2}, v1"); e("v_lshlrev_b32 v2, 7, v4")
        e(f"v_mov_b32 v3, s{T0+1}"); e(f"v_add_co_u32 v2, vcc, s{T0}, v2"); e("v_addc_co_u32 v3, vcc, 0, v3, vcc")
        e(f"v_cmp_gt_u32 vcc, (L_end-{KNAME})/128, v4")
        e(f"s_mov_b64 exec, {(1 << o['nl']) - 1}"); e("s_and_b64 exec, exec, vcc")
        lct = e.newlabel('ct'); e(f"s_cbranch_execz {lct}")
        e("global_load_dword v8, v[2:3], off")
        e.label(lct)
        e("s_mov_b64 exec, -1")
    prologue('h')
    vm = VM(e)
    srd(e, M1, 24, 1280)
    e("v_lshlrev_b32 v2, 4, v1")
    for m in range(2):
        e(f"s_mov_b32 m0, {GTAB + 1024*m}"); e(f"s_movk_i32 s{T0}, {1024*m}")
        e(f"buffer_load_dwordx4 v2, s[{M1}:{M1+3}], s{T0} offen lds"); vm.issue('gate')
    if o['bari']: e("s_barrier")
    TA, TB = 88, 92
    srd(e, TA, 10, 640*3840); srd(e, TB, 16, 640*3456)
    e(f"s_mul_i32 s{T0}, s{sRH}, 1012"); e(f"s_mul_i32 s{T1}, s{sQ}, 33"); e(f"s_add_u32 s{T0}, s{T0}, s{T1}")
    e(f"v_add_u32 v3, s{T0}, v1"); e("v_mul_u32_u24 v4, 1280, v3"); e(f"v_mov_b32 v5, {BIG}")
    e("v_cmp_gt_u32 vcc, 2048, v3"); e("s_nop 1"); e("v_cndmask_b32 v4, v5, v4, vcc")
    e("v_cmp_gt_u32 vcc, 33, v1"); e("s_nop 1"); e("v_cndmask_b32 v4, v5, v4, vcc")
    sTX, sTA, sTB = 65, 66, 67
    e(f"s_mov_b32 s{sTX}, 0"); e(f"s_mov_b32 s{sTA}, 0"); e(f"s_mov_b32 s{sTB}, 0")
    def touch_x(tag='tx'):
        e(f"buffer_load_dword v8, v4, s[{X}:{X+3}], s{sTX} offen"); vm.issue(tag)
        e(f"s_add_u32 s{sTX}, s{sTX}, 128")
    if o['touch']: touch_x('t0')
    e("v_mul_u32_u24 v6, 43, v1"); e("v_lshrrev_b32 v6, 7, v6"); e("v_mul_u32_u24 v7, 3, v6"); e("v_sub_u32 v7, v1, v7")
    e("v_mul_u32_u24 v6, 1280, v6"); e("v_lshl_add_u32 v6, v7, 7, v6")
    e(f"s_mul_i32 s{T0}, s{sCQ}, 320"); e(f"s_and_b32 s{T0}, s{T0}, 0xffffff80"); e(f"s_mul_i32 s{T1}, s{sQ}, 3840"); e(f"s_add_u32 s{T0}, s{T0}, s{T1}")
    e(f"v_add_u32 v6, s{T0}, v6"); e("v_cmp_gt_u32 vcc, 9, v1"); e("s_nop 1"); e("v_cndmask_b32 v6, v5, v6, vcc")
    e(f"s_mul_i32 s{T0}, s{sCQ}, 14"); e(f"s_add_u32 s{T1}, s{T0}, 13"); e(f"s_lshr_b32 s{T0}, s{T0}, 3"); e(f"s_lshr_b32 s{T1}, s{T1}, 3")
    e(f"s_add_u32 s{T1}, s{T1}, 1"); e(f"s_lshl_b32 s{T0}, s{T0}, 9"); e(f"s_lshl_b32 s{T1}, s{T1}, 9"); e(f"s_min_u32 s{T1}, s{T1}, 3456")
    e("v_lshlrev_b32 v7, 7, v1"); e(f"v_add_u32 v7, s{T0}, v7"); e(f"v_cmp_gt_u32 vcc, s{T1}, v7")
    e(f"s_mul_i32 s{T2}, s{sQ}, 3456"); e(f"v_add_u32 v7, s{T2}, v7"); e("v_cndmask_b32 v7, v5, v7, vcc")
    def touch_w(tag='tw'):
        e(f"buffer_load_dword v8, v6, s[{TA}:{TA+3}], s{sTA} offen"); vm.issue(tag)
        e(f"buffer_load_dword v8, v7, s[{TB}:{TB+3}], s{sTB} offen"); vm.issue(tag)
        e(f"s_add_u32 s{sTA}, s{sTA}, {32*3840}"); e(f"s_add_u32 s{sTB}, s{sTB}, {32*3456}")
    if o['touch']:
        touch_w('t0'); touch_w('t0'); touch_x('t0'); touch_w('t0')
        for j in range(3, DW):
            if j % 2 == 0: touch_x()
            touch_w()
    stamp(11)
    e("v_lshrrev_b32 v12, 1, v1")
    e(f"v_lshlrev_b32 v13, 1, v12"); e(f"v_add_u32 v13, {GTAB}, v13")
    e(f"v_add_u32 v9, 1280, v13"); e(f"s_lshl_b32 s{T0}, s{sROT}, 7"); e(f"v_add_u32 v13, s{T0}, v13")
    e("v_lshrrev_b32 v14, 3, v12"); e("v_and_b32 v14, 1, v14"); e("v_xor_b32 v14, 1, v14"); e("v_lshlrev_b32 v14, 5, v14")
    e("v_lshl_add_u32 v14, v12, 6, v14"); e("v_and_b32 v15, 1, v1"); e("v_lshl_add_u32 v14, v15, 4, v14")
    for sl in range(4): e(f"v_add_u32 v{24+sl}, {WBASE + 7*2048 + sl*16384}, v14")
    NU = 7
    RV = 44
    TRA = 140
    sSRC = 8; sDST = 16
    labr = e.newlabel('rpsetup')
    e(f"s_cmp_eq_u32 s{sISA}, 1"); e(f"s_cbranch_scc1 {labr}")
    e("v_lshrrev_b32 v10, 3, v1"); e("v_mul_u32_u24 v10, 1280, v10"); e("v_and_b32 v11, 7, v1"); e("v_lshl_add_u32 v10, v11, 4, v10")
    e("v_lshrrev_b32 v16, 4, v1"); e("v_bfe_u32 v17, v1, 2, 2"); e("v_and_b32 v18, 3, v1"); e("v_lshlrev_b32 v21, 4, v1")
    UO, U2 = 88, 92
    srd(e, UO, 12, 640*1280); srd(e, U2, 20, 1728*1280)
    for m in range(NU):
        sU, sC, sIV = T0, T1, T2
        e(f"s_sub_u32 s{T3}, s{sFLAG}, 144"); e(f"s_mul_i32 s{T3}, s{T3}, {NU}"); e(f"s_add_u32 s{T3}, s{T3}, {m}")
        e(f"s_mul_i32 s{sU}, s{T3}, 205"); e(f"s_lshr_b32 s{sU}, s{sU}, 11")
        e(f"s_mul_i32 s{T4}, s{sU}, 10"); e(f"s_sub_u32 s{sC}, s{T3}, s{T4}")
        e(f"s_cmp_lt_u32 s{T3}, 740"); e(f"s_cselect_b32 s{sIV}, 0, {BIG}")
        e(f"s_cmp_lt_u32 s{sU}, 20")
        e(f"s_cselect_b32 s{T4}, 0, 20"); e(f"s_cselect_b32 s{T5}, 3, 2"); csel(e, T6, 512, 2048)
        e(f"s_cselect_b32 s{70}, 1, 0")
        e(f"s_sub_u32 s{T4}, s{sU}, s{T4}"); e(f"s_mul_i32 s{T4}, s{T4}, {32*1280}")
        e(f"s_lshl_b32 s70, s70, 31"); e(f"s_or_b32 s{sSRC+m}, s{T4}, s70")
        e(f"s_lshl_b32 s{T4}, s{sC}, 7"); e(f"s_or_b32 s{T4}, s{T4}, s{sIV}"); e(f"v_add_u32 v{RV+m}, s{T4}, v10")
        e(f"v_lshlrev_b32 v19, s{T5}, v16"); e("v_add_u32 v19, v19, v17")
        e("v_lshlrev_b32 v19, 7, v19"); e("v_lshl_add_u32 v19, v18, 3, v19"); e(f"v_add_u32 v{TRA+3*m}, {RSCR + m*4096}, v19")
        e(f"v_add_u32 v{TRA+3*m+1}, s{T6}, v{TRA+3*m}"); e(f"v_or_b32 v{TRA+3*m+2}, s{sIV}, v21")
        e(f"s_lshl_b32 s{T3}, s{sC}, 2")
        for tt in range(4):
            e(f"s_mul_i32 s{T4}, s{T3}, 52"); e(f"s_lshr_b32 s{T4}, s{T4}, 8"); e(f"s_mul_i32 s{T4}, s{T4}, 365")
            e(f"s_add_u32 s{T4}, s{T4}, s{T3}"); e(f"s_mul_i32 s{T5}, s{sU}, 5"); e(f"s_add_u32 s{T4}, s{T4}, s{T5}")
            e(f"s_lshl_b32 s{T4}, s{T4}, 10"); e(f"s_add_u32 s{T4}, s{T4}, {WP_OFF}"); e(f"s_and_b32 s{T4}, s{T4}, 0x00ffffff")
            e(f"v_writelane_b32 v170, s{T4}, {4*m+tt}")
            e(f"s_add_u32 s{T3}, s{T3}, 1")
    e.label(labr)
    if o['touch']: vm.wait('t0')
    else: vm.wait('gate')
    if o['touch']: e("s_barrier")
    GV = 100
    labg = e.newlabel('gv')
    e(f"s_cmp_eq_u32 s{sISA}, 1"); e(f"s_cbranch_scc0 {labg}")
    for st in range(20):
        e(f"ds_read_u16 v{GV+2*st}, v13"); e("v_add_u32 v13, 64, v13"); e("v_subrev_u32 v23, 1280, v13")
        e("v_cmp_le_u32 vcc, v9, v13"); e("s_nop 1"); e("v_cndmask_b32 v13, v13, v23, vcc")
    e("s_waitcnt lgkmcnt(0)")
    for st in range(20):
        e(f"v_lshl_or_b32 v{GV+2*st}, v{GV+2*st}, 16, v{GV+2*st}"); e(f"v_mov_b32 v{GV+2*st+1}, v{GV+2*st}")
    e.label(labg)
    def gate_write(st):
        e(f"ds_write2_b64 v{24 + st % NW}, v[{GV+2*st}:{GV+2*st+1}], v[{GV+2*st}:{GV+2*st+1}] offset1:1")
    def gated(sts):
        lab = e.newlabel('gw')
        e(f"s_cmp_eq_u32 s{sISA}, 1"); e(f"s_cbranch_scc0 {lab}")
        for st in sts: gate_write(st)
        e("s_waitcnt lgkmcnt(0)")
        e.label(lab)
    gated([0, 1, 2])
    e("s_barrier")
    e("s_barrier")
    e("s_setprio 2")
    def rp_issue(m):
        lw, ld = e.newlabel('rpw'), e.newlabel('rpd')
        e(f"s_and_b32 s{T4}, s{sSRC+m}, 0x7fffffff"); e(f"s_bitcmp1_b32 s{sSRC+m}, 31"); e(f"s_cbranch_scc1 {lw}")
        for srd_, lab in ((92, None), (88, lw)):
            if lab: e(f"s_branch {ld}"); e.label(lab)
            for d in range(4):
                e(f"s_mov_b32 m0, {RSCR + m*4096 + d*1024}")
                e(f"buffer_load_dwordx4 v{RV+m}, s[{srd_}:{srd_+3}], s{T4} offen lds")
                if d < 3: e(f"s_add_u32 s{T4}, s{T4}, {8*1280}")
        e.label(ld)
        for d in range(4): vm.issue(f'rp{m}')
    def rp_finish(m):
        vm.wait(f'rp{m}')
        D = 176 + 16 * (m % 2)
        for tt in range(4):
            e(f"ds_read_b64_tr_b16 v[{D+4*tt}:{D+4*tt+1}], v{TRA+3*m} offset:{32*tt}")
            e(f"ds_read_b64_tr_b16 v[{D+4*tt+2}:{D+4*tt+3}], v{TRA+3*m+1} offset:{32*tt}")
        for tt in range(4): e(f"v_readlane_b32 s{16+tt}, v170, {4*m+tt}")
        e("s_waitcnt lgkmcnt(0)")
        for tt in range(4):
            e(f"buffer_store_dwordx4 v[{D+4*tt}:{D+4*tt+3}], v{TRA+3*m+2}, s[{WS}:{WS+3}], s{16+tt} offen sc1"); vm.issue('rps')
    R = o['rpj']
    def b_only(fn):
        lab = e.newlabel('bo')
        e(f"s_cmp_eq_u32 s{sISA}, 1"); e(f"s_cbranch_scc1 {lab}"); fn(); e.label(lab)
    for j in range(18):
        if o['touch'] and j + DW < 20: touch_w()
        if o['touch'] and j % 2 == 0 and (j // 2 + 5) < 10: touch_x()
        if j + 3 < 20: gated([j + 3])
        if j == R:
            def f():
                for m in range(NU): rp_issue(m)
                e("v_mov_b32 v28, 0"); e(f"buffer_load_dword v29, v28, s[{DBG}:{DBG+3}], 0 offen sc1"); vm.issue('chk')
            b_only(f)
        if R + 3 <= j < R + 7:
            ms = [m for m in (2 * (j - R - 3), 2 * (j - R - 3) + 1) if m < NU]
            b_only(lambda: [rp_finish(m) for m in ms])
        if j == R + 9:
            def f():
                lo, lk = e.newlabel('rcl'), e.newlabel('rck')
                vm.wait('rps')
                e(f"s_mov_b32 s{T0}, 0x40000")
                e.label(lo)
                e("v_cmp_eq_u32 vcc, 1, v29"); e(f"s_cbranch_vccnz {lk}")
                e(f"buffer_load_dword v29, v28, s[{DBG}:{DBG+3}], 0 offen sc1"); e("s_waitcnt vmcnt(0)")
                e(f"s_sub_u32 s{T0}, s{T0}, 1"); e(f"s_cmp_lg_u32 s{T0}, 0"); e(f"s_cbranch_scc1 {lo}")
                e.label(lk)
                e(f"s_sub_u32 s{T0}, s{sFLAG}, 144"); e(f"s_lshl_b32 s{T0}, s{T0}, 6"); e(f"s_add_u32 s{T0}, s{T0}, {FL2_OFF}")
                e("v_mov_b32 v30, 1"); e("s_mov_b64 exec, 1")
                e(f"buffer_store_dword v30, v28, s[{WS}:{WS+3}], s{T0} offen sc1"); vm.issue('flag')
                e("s_mov_b64 exec, -1")
            b_only(f)
        loader_early(j, vm)
        stepbar(j)
    e("s_setprio 0")
    loader_tail()

    e.label("L_phase3")
    if o['p3prio']:
        e(f"s_cmp_ge_u32 s{sWAVE}, 4"); lp_ = e.newlabel('hp'); e(f"s_cbranch_scc0 {lp_}"); e("s_setprio 1"); e.label(lp_)
    e("v_lshlrev_b32 v4, 4, v1")
    e(f"s_cmp_eq_u32 s{sN3}, 9"); e(f"s_cselect_b32 s{T6}, {BIG}, 0"); e(f"v_or_b32 v5, s{T6}, v4")
    e(f"s_cmp_lt_u32 s{sWAVE}, 2"); e("s_cbranch_scc1 L_p3_fo")
    e(f"s_add_u32 s{T0}, s{sWAVE}, 2"); e(f"s_sub_u32 s{T1}, s{sWAVE}, 4"); e(f"s_cmp_ge_u32 s{sWAVE}, 4"); e(f"s_cselect_b32 s{T0}, s{T1}, s{T0}")
    e(f"s_mul_i32 s{T2}, s{T0}, 9")
    e(f"s_lshr_b32 s{T4}, s{sI3}, 1"); e(f"s_mul_i32 s{T4}, s{T4}, 7"); e(f"s_add_u32 s{T4}, s{T4}, 144")
    e(f"s_lshr_b32 s{T5}, s{T2}, 3"); e(f"s_add_u32 s{T5}, s{T5}, s{T4}")
    e(f"s_add_u32 s{T2}, s{T2}, 8"); e(f"s_lshr_b32 s{T2}, s{T2}, 3"); e(f"s_add_u32 s{T2}, s{T2}, s{T4}")
    e(f"v_mov_b32 v2, s{T5}"); e(f"v_mov_b32 v3, s{T2}"); e("v_cmp_gt_u32 vcc, 4, v1"); e("s_nop 1"); e("v_cndmask_b32 v2, v3, v2, vcc")
    e("s_branch L_p3_fd")
    e.label("L_p3_fo")
    e(f"s_lshl_b32 s{T4}, s{sI3}, 6"); e(f"s_mul_i32 s{T5}, s{T4}, 575"); e(f"s_lshr_b32 s{T5}, s{T5}, 16")
    e(f"s_add_u32 s{T4}, s{T4}, 63"); e(f"s_mul_i32 s{T4}, s{T4}, 575"); e(f"s_lshr_b32 s{T4}, s{T4}, 16")
    e(f"s_lshl_b32 s{T5}, s{T5}, 3"); e(f"s_lshl_b32 s{T4}, s{T4}, 3"); e(f"s_lshl_b32 s{T1}, s{sWAVE}, 2")
    e(f"s_add_u32 s{T5}, s{T5}, s{T1}"); e(f"s_add_u32 s{T4}, s{T4}, s{T1}")
    e(f"v_mov_b32 v2, s{T5}"); e(f"v_mov_b32 v3, s{T4}"); e("v_cmp_gt_u32 vcc, 4, v1"); e("s_nop 1"); e("v_cndmask_b32 v2, v3, v2, vcc")
    e("v_and_b32 v3, 3, v1"); e("v_add_u32 v2, v2, v3")
    e.label("L_p3_fd")
    e("v_lshlrev_b32 v2, 6, v2"); e(f"v_mov_b32 v3, {BIG}"); e("v_cmp_gt_u32 vcc, 8, v1"); e("s_nop 1"); e("v_cndmask_b32 v2, v3, v2, vcc")
    e("v_mov_b32 v7, 0"); e("v_cmp_gt_u32 vcc, 8, v1"); e("s_nop 1"); e("v_cndmask_b32 v7, 0, 1, vcc")
    e(f"s_mov_b32 s{T1}, {FL_OFF}")
    if o['spr']:
        lb4 = e.newlabel('b4')
        e(f"s_cmp_ge_u32 s{sWAVE}, 4"); e(f"s_cbranch_scc1 {lb4}"); e(f"s_cmp_eq_u32 s{sISA}, 1"); e(f"s_cbranch_scc1 {lb4}")
        w_pref(0, 4)
        e.label(lb4)
    else:
        e(f"s_cmp_ge_u32 s{sWAVE}, 4"); e("s_cbranch_scc1 L_p3_L")
    def w_addr(t):
        return [f"s_add_u32 s{sIW}, s{sIDX}, {t}", f"s_sub_u32 s{sSO}, s{sIW}, s{sN3}", f"s_cmp_ge_u32 s{sIW}, s{sN3}", f"s_cselect_b32 s{sIW}, s{sSO}, s{sIW}",
                f"s_mul_i32 s{sSO}, s{sIW}, 5120", f"s_add_u32 s{sSO}, s{sSO}, s{sWP}", f"s_add_u32 s{sSO4}, s{sSO}, 4096"]
    def w_ld(t, q):
        b = WB3 + 20 * (t % PW); vo = 5 if t == 9 else 4
        if q < 4: return f"buffer_load_dwordx4 v[{b+4*q}:{b+4*q+3}], v{vo}, s[{WS}:{WS+3}], s{sSO} offen offset:{q*1024} sc1"
        return f"buffer_load_dwordx4 v[{b+4*q}:{b+4*q+3}], v{vo}, s[{WS}:{WS+3}], s{sSO4} offen sc1"
    sAO = 70
    def a_addr(t):
        return [f"s_add_u32 s{sIA}, s{sIDX}, {t}", f"s_sub_u32 s{sAO}, s{sIA}, s{sN3}", f"s_cmp_ge_u32 s{sIA}, s{sN3}", f"s_cselect_b32 s{sIA}, s{sAO}, s{sIA}",
                f"s_lshl_b32 s{sAO}, s{sIA}, 12", f"s_add_u32 s{sAO}, s{sAO}, s{sACT}"]
    def a_ld(t, mt):
        b = AB + 16 * (t % 3); vo = 5 if t == 9 else 4
        return f"buffer_load_dwordx4 v[{b+4*mt}:{b+4*mt+3}], v{vo}, s[{WS}:{WS+3}], s{sAO} offen offset:{mt*1024} sc1"
    def p3_main(var):
        vm3 = VM(e)
        E = o['ea']; assert o['ea'] == o['eb']
        miss = list(range(E, 6)) if var in ('L', 'U') else list(range(6))
        first, later = miss[:2], miss[2:]
        e(f"buffer_load_dword v6, v2, s[{WS}:{WS+3}], s{T1} offen sc1"); vm3.issue('poll')
        for t in first:
            for x in w_addr(t): e(x)
            for q in range(5): e(w_ld(t, q)); vm3.issue(f'w{t}')
        for r in range(80): e(f"v_mov_b32 v{A3+r}, 0")
        vm3.wait('poll')
        lp, lk = e.newlabel('poll'), e.newlabel('pollok')
        e(f"s_mov_b32 s{T0}, 0x40000")
        e.label(lp)
        e("v_cmp_ne_u32 vcc, v6, v7"); e(f"s_cbranch_vccz {lk}")
        e(f"buffer_load_dword v6, v2, s[{WS}:{WS+3}], s{T1} offen sc1"); e("s_waitcnt vmcnt(0)")
        e(f"s_sub_u32 s{T0}, s{T0}, 1"); e(f"s_cmp_lg_u32 s{T0}, 0"); e(f"s_cbranch_scc1 {lp}")
        e.label(lk)
        stamp(5)
        for t in (0, 1):
            for x in a_addr(t): e(x)
            for mt in range(4): e(a_ld(t, mt)); vm3.issue(f'a{t}')
        if var in ('C', 'U'):
            e(f"s_lshl_b32 s{T2}, s{sI3}, 8"); e(f"s_add_u32 s{T2}, s{T2}, {G_OFF}"); e("v_lshlrev_b32 v2, 2, v1")
            e(f"s_cmp_eq_u32 s{sWAVE}, 0"); e(f"s_cselect_b32 s{T3}, 0, {BIG}"); e(f"v_or_b32 v2, s{T3}, v2")
            e(f"buffer_load_dword v3, v2, s[{WS}:{WS+3}], s{T2} offen sc1"); vm3.issue('g')
        for t in later:
            for x in w_addr(t): e(x)
            for q in range(5): e(w_ld(t, q)); vm3.issue(f'w{t}')
        for t in range(10):
            idx = [i for i, tg in enumerate(vm3.q) if tg in (f'a{t}', f'w{t}')]
            if idx: vm3.wait(vm3.q[max(idx)])
            if t == 9:
                e(f"s_cmp_eq_u32 s{sN3}, 9"); e("s_cbranch_scc1 L_p3_main_done")
            bw = WB3 + 20 * (t % PW); ba = AB + 16 * (t % 3)
            doa = t + 2 < 10; dow = t + PW < 10
            pre = (a_addr(t + 2) if doa else []) + (w_addr(t + PW) if dow else [])
            for q in range(5):
                for mt in range(4):
                    a = A3 + (q * 4 + mt) * 4
                    e(f"v_mfma_f32_16x16x32_bf16 v[{a}:{a+3}], v[{bw+4*q}:{bw+4*q+3}], v[{ba+4*mt}:{ba+4*mt+3}], v[{a}:{a+3}]")
                    if q == 0:
                        for x in pre[mt*4:(mt+1)*4]: e(x)
                if doa and q < 4: e(a_ld(t + 2, q)); vm3.issue(f'a{t+2}')
                if dow: e(w_ld(t + PW, q)); vm3.issue(f'w{t+PW}')
        e("s_branch L_p3_main_done") if var == 'C' else None
    if o['spr']:
        assert o['ea'] == 4
        p3_main('U')
    else:
        p3_main('C')
        e.label("L_p3_L")
        p3_main('L')
    e.label("L_p3_main_done")
    stamp(6)
    e("s_setprio 0")
    srd(e, M1, 26, 2048 * 1280)
    srd(e, M2, 22, 1280)
    e("s_waitcnt vmcnt(0)")
    e("v_lshrrev_b32 v6, 4, v1"); e("v_lshlrev_b32 v6, 3, v6"); e(f"s_mul_i32 s{T4}, s{sJ3}, 160"); e(f"v_add_u32 v6, s{T4}, v6")
    for r in range(3):
        e(f"s_add_u32 s{T0}, s{sWAVE}, {8*r}"); e(f"s_lshr_b32 s{T0}, s{T0}, 2"); e(f"s_lshl_b32 s{T0}, s{T0}, 5")
        e(f"v_add_u32 v{96+r}, s{T0}, v6")
        e(f"buffer_load_dwordx2 v[{88+2*r}:{89+2*r}], v{96+r}, s[{M2}:{M2+3}], 0 offen")
    e(f"s_mul_i32 s{T0}, s{sWAVE}, 20480"); e(f"v_add_u32 v2, s{T0}, v4")
    lz = e.newlabel('t0')
    e(f"s_cmp_eq_u32 s{sWAVE}, 0"); e(f"s_cbranch_scc0 {lz}")
    e("v_lshlrev_b32 v7, 2, v1"); e("ds_write_b32 v7, v3")
    e("s_branch L_red_w1")
    e.label(lz)
    e(f"ds_write_b128 v2, v[{A3}:{A3+3}]")
    e.label("L_red_w1")
    for tau in range(1, 20): e(f"ds_write_b128 v2, v[{A3+4*tau}:{A3+4*tau+3}] offset:{tau*1024}")
    e("s_waitcnt lgkmcnt(0)")
    e("s_barrier")
    stamp(15)
    RD = 136
    for r in range(3):
        if r == 2:
            e(f"s_cmp_ge_u32 s{sWAVE}, 4"); e("s_cbranch_scc1 L_red_rd_done")
        e(f"s_add_u32 s{T0}, s{sWAVE}, {8*r}"); e(f"s_and_b32 s{T2}, s{T0}, 3")
        e(f"s_lshl_b32 s{T3}, s{T0}, 10"); e(f"v_add_u32 v2, s{T3}, v4"); e("v_add_u32 v3, 0x14000, v2")
        for w in range(8):
            e(f"ds_read_b128 v[{RD+32*r+4*w}:{RD+32*r+4*w+3}], v{2 if w < 4 else 3} offset:{(w % 4) * 20480}")
        e("v_and_b32 v7, 15, v1"); e(f"s_lshl_b32 s{T5}, s{T2}, 4"); e(f"v_add_u32 v7, s{T5}, v7")
        e(f"v_lshlrev_b32 v{100+r}, 2, v7"); e(f"ds_read_b32 v{104+r}, v{100+r}")
        e(f"s_lshl_b32 s{T4}, s{sI3}, 6"); e(f"v_add_u32 v7, s{T4}, v7"); e(f"v_mul_u32_u24 v7, 1280, v7"); e(f"v_add_u32 v{96+r}, v7, v{96+r}")
    e.label("L_red_rd_done")
    e("s_waitcnt vmcnt(0)")
    for r in range(3):
        if r == 2:
            e(f"s_cmp_ge_u32 s{sWAVE}, 4"); e("s_cbranch_scc1 L_fin")
        P = RD + 32 * r
        e("s_waitcnt lgkmcnt(0)") if r == 0 else None
        if r == 0:
            lo = e.newlabel('own')
            e(f"s_cmp_eq_u32 s{sWAVE}, 0"); e(f"s_cbranch_scc0 {lo}")
            for q in range(4): e(f"v_mov_b32 v{P+q}, v{A3+q}")
            e.label(lo)
        for q in range(4):
            e(f"v_add_f32 v{P+q}, v{P+q}, v{P+4+q}")
            e(f"v_add_f32 v{P+8+q}, v{P+8+q}, v{P+12+q}"); e(f"v_add_f32 v{P+16+q}, v{P+16+q}, v{P+20+q}")
            e(f"v_add_f32 v{P+24+q}, v{P+24+q}, v{P+28+q}")
            e(f"v_add_f32 v{P+8+q}, v{P+8+q}, v{P+16+q}"); e(f"v_add_f32 v{P+8+q}, v{P+8+q}, v{P+24+q}")
        bb = 88 + 2 * r
        e(f"v_lshlrev_b32 v108, 16, v{bb}"); e(f"v_and_b32 v109, 0xffff0000, v{bb}"); e(f"v_lshlrev_b32 v110, 16, v{bb+1}"); e(f"v_and_b32 v111, 0xffff0000, v{bb+1}")
        e(f"v_sub_f32 v112, 1.0, v{104+r}")
        for q in range(4):
            e(f"v_add_f32 v{P+8+q}, v{P+8+q}, v{108+q}"); e(f"v_mul_f32 v{P+8+q}, v{P+8+q}, v112"); e(f"v_fma_f32 v{P+8+q}, v{P+q}, v{104+r}, v{P+8+q}")
        e(f"v_cvt_pk_bf16_f32 v{P}, v{P+8}, v{P+9}"); e(f"v_cvt_pk_bf16_f32 v{P+1}, v{P+10}, v{P+11}")
        e(f"buffer_store_dwordx2 v[{P}:{P+1}], v{96+r}, s[{M1}:{M1+3}], 0 offen")
    e.label("L_fin")
    if o['ts']:
        stamp(7)
        e(f"s_lshl_b32 s{T0}, s2, 3"); e(f"s_add_u32 s{T0}, s{T0}, s{sWAVE}"); e(f"s_lshl_b32 s{T0}, s{T0}, 6"); e(f"s_add_u32 s{T0}, s{T0}, {TS_OFF}")
        e("v_lshlrev_b32 v2, 2, v1"); e("s_mov_b64 exec, 0xffff")
        e(f"buffer_store_dword v0, v2, s[{WS}:{WS+3}], s{T0} offen")
    if o['span']:
        stamp(7)
        e("v_readlane_b32 s56, v0, 8"); e("s_nop 3"); e("v_subrev_u32 v0, s56, v0")
        e(f"s_lshl_b32 s57, s2, 3"); e(f"s_add_u32 s57, s57, s{sWAVE}")
        e(f"s_cmp_eq_u32 s57, {o['span_a']}"); e("s_cselect_b32 s58, 4, -1")
        e(f"s_cmp_eq_u32 s57, {o['span_b']}"); e("s_cselect_b32 s58, 32, s58")
        e("s_cmp_eq_u32 s58, -1"); e("s_cbranch_scc1 L_end")
        e("v_lshlrev_b32 v2, 2, v1"); e("v_add_u32 v2, s58, v2"); e("s_mov_b64 exec, 0xfe")
        e(f"buffer_store_dword v0, v2, s[{DBG}:{DBG+3}], 0 offen")
    e.label("L_end")
    body, nh = e.text()
    hdr = open('gated_mix__sliding_local_dilated__dense_activation_squared_relu__prompt.s.ref').read().split('\n')
    comments = [l for l in hdr if l.startswith(';') and '@launch' not in l and 'Override launch' not in l and 'grid=ceil' not in l]
    return "\n".join(comments) + f"""
; @launch grid=(256,1,1) block=(512,1,1) lds={LDS_BYTES}
.amdgcn_target "amdgcn-amd-amdhsa--gfx950"
.text
.globl {KNAME}
.p2align 8
.type {KNAME},@function
{KNAME}:
{body}
    s_endpgm
.section .rodata,"a"
.p2align 6
.amdhsa_kernel {KNAME}
  .amdhsa_next_free_vgpr 256
  .amdhsa_next_free_sgpr 102
  .amdhsa_accum_offset 256
  .amdhsa_group_segment_fixed_size 0
  .amdhsa_kernarg_size 96
  .amdhsa_user_sgpr_count 2
  .amdhsa_user_sgpr_kernarg_segment_ptr 1
  .amdhsa_system_sgpr_workgroup_id_x 1
.end_amdhsa_kernel
"""

if __name__ == "__main__":
    import argparse
    ap = argparse.ArgumentParser()
    ap.add_argument('-o', default='k.s'); ap.add_argument('--stop', default=None); ap.add_argument('--ts', action='store_true'); ap.add_argument('--span', action='store_true'); ap.add_argument('--touch', action='store_true'); ap.add_argument('--norot', action='store_true'); ap.add_argument('--steps', action='store_true'); ap.add_argument('--noprio', action='store_true'); ap.add_argument('--rpj', type=int, default=0); ap.add_argument('--ea', type=int, default=4); ap.add_argument('--eb', type=int, default=4); ap.add_argument('--irot', action='store_true'); ap.add_argument('--noct', action='store_true'); ap.add_argument('--nospr', action='store_true'); ap.add_argument('--nop3prio', action='store_true'); ap.add_argument('--bari', action='store_true')
    a = ap.parse_args()
    open(a.o, 'w').write(gen(dict(stop=a.stop, ts=a.ts, span=a.span, touch=a.touch, rot=not a.norot, steps=a.steps, prio=not a.noprio, rpj=a.rpj, ea=a.ea, eb=a.eb, irot=a.irot, ctouch=not a.noct, spr=not a.nospr, p3prio=not a.nop3prio, bari=a.bari)))
```

```python
import sys
from emit import Emitter

KNAME = "gated_mix__sliding_local_dilated__dense_activation_squared_relu__prompt_kernel"

HP_OFF = 0x0
OP_OFF = 0x700000
WP_OFF = 0xA00000
G_OFF = 0xD00000
FL_OFF = 0xD10000
FL2_OFF = 0xD14000
TS_OFF = 0xD20000
WS_SIZE = 0xE00000

NX = 4
NW = 4
XU = 16384
WBASE = NX * XU
RSCR = WBASE + NW * 16384
DW = 9
GTAB = RSCR
PQ = 488
QB = 32768
OB = 131072 + 2048
PO = 176
LDS_BYTES = 163840

BIG = 0x80000000

sP = 2
sWAVE, sISA, sRB, sCG = 32, 33, 34, 35
X, W, WS, M1, M2 = 36, 40, 44, 48, 52
T0, T1, T2, T3, T4, T5, T6, T7 = 56, 57, 58, 59, 60, 61, 62, 63
sLW = 64
sKX, sKW0, sKW1, sKWH, sKWE = 65, 66, 67, 68, 69
sIT = 77
sMH, sNH = 74, 75
sT0 = 76
sPITCH = 77
sI3, sJ3 = 78, 79
sACT, sWP, sIDX = 80, 81, 82
sN3, sIW, sIA, sSO, sSO4, sCHK = 64, 65, 66, 67, 68, 69
sODD = 83
sROT = 3
sFLAG = 84
sRH, sCQ, sQ = 100, 101, 85
sGATE = 74
sTS = 86
sEX = 88
sM = 90
DBG = 96

def srd(e, base, ptr, nbytes):
    e(f"s_mov_b32 s{base}, s{ptr}")
    e(f"s_and_b32 s{base+1}, s{ptr+1}, 0xffff")
    if isinstance(nbytes, int): e(f"s_mov_b32 s{base+2}, {nbytes}")
    else: e(f"s_mov_b32 s{base+2}, {nbytes}")
    e(f"s_mov_b32 s{base+3}, 0x20000")

def csel(e, dst, a, b):
    e(f"s_mov_b32 s{dst}, {b}")
    e(f"s_cselect_b32 s{dst}, {a}, s{dst}")

class VM:
    def __init__(self, e): self.e = e; self.q = []
    def issue(self, tag): self.q.append(tag)
    def wait(self, tag):
        idx = max(i for i, t in enumerate(self.q) if t == tag)
        n = len(self.q) - 1 - idx
        assert n < 64, n
        self.e(f"s_waitcnt vmcnt({n})")
        self.q = self.q[idx + 1:]
    def waitall(self):
        self.e("s_waitcnt vmcnt(0)"); self.q = []

def gen(opts=None):
    o = dict(nb=3, na=4, early45=False, bari=False, p3prio=True, spr=True, ctouch=True, nl=12, irot=False, ea=4, eb=4, rot=True, rotb=2, rpj=2, prio=True, steps=False, touch=False, stop=None, ts=False, span=False, span_a=8*9+0, span_b=8*14+0)
    if opts: o.update(opts)
    e = Emitter()
    nstamp = [0]
    def stamp(idx):
        if o['span'] and idx in (8, 0, 1, 2, 4, 5, 6, 7, 3):
            e(f"s_memrealtime s[{sTS}:{sTS+1}]"); e("s_waitcnt lgkmcnt(0)")
            e(f"v_writelane_b32 v0, s{sTS}, {idx}")
            return
        if not o['ts']: return
        e(f"s_memrealtime s[{sTS}:{sTS+1}]")
        e("s_waitcnt lgkmcnt(0)")
        e(f"v_writelane_b32 v0, s{sTS}, {idx}")

    def stepbar(j):
        if o['steps']:
            e(f"s_memtime s[{sTS}:{sTS+1}]"); e("s_waitcnt lgkmcnt(0)"); e(f"v_writelane_b32 v250, s{sTS}, {j}")
        e("s_barrier")
        if o['steps']:
            e(f"s_memtime s[{sTS}:{sTS+1}]"); e("s_waitcnt lgkmcnt(0)"); e(f"v_writelane_b32 v251, s{sTS}, {j}")
    e(f"s_cmp_ge_u32 s2, 256")
    e("s_cbranch_scc1 L_end")
    if o['ts'] or o['span']:
        e(f"s_memrealtime s[{sTS}:{sTS+1}]")
    e("s_load_dwordx16 s[8:23], s[0:1], 0")
    e("s_load_dwordx8 s[24:31], s[0:1], 64")
    e("v_and_b32 v1, 63, v0")
    e("v_lshrrev_b32 v2, 6, v0")
    e("s_nop 0")
    e(f"v_readfirstlane_b32 s{sWAVE}, v2")
    e(f"s_cmp_eq_u32 s{sWAVE}, 4"); e("s_cbranch_scc1 L_ldx")
    e(f"s_cmp_eq_u32 s{sWAVE}, 5"); e("s_cbranch_scc1 L_ldw0")
    e(f"s_cmp_eq_u32 s{sWAVE}, 6"); e("s_cbranch_scc1 L_ldw1")
    e(f"s_cmp_eq_u32 s{sWAVE}, 7"); e("s_cbranch_scc1 L_helper")
    def prologue(tag):
        e(f"s_and_b32 s{sRH}, s2, 1"); e(f"s_bfe_u32 s{sCQ}, s2, 0x20001"); e(f"s_lshr_b32 s{sQ}, s2, 3")
        e(f"s_cmp_lt_u32 s{sQ}, 18"); e(f"s_cselect_b32 s{sISA}, 1, 0"); e(f"s_cbranch_scc0 L_role_b{tag}")
        e(f"s_mul_i32 s{sRB}, s{sRH}, 9"); e(f"s_lshr_b32 s{T2}, s{sQ}, 1"); e(f"s_add_u32 s{sRB}, s{sRB}, s{T2}")
        e(f"s_lshl_b32 s{sCG}, s{sCQ}, 1"); e(f"s_and_b32 s{T2}, s{sQ}, 1"); e(f"s_add_u32 s{sCG}, s{sCG}, s{T2}")
        e(f"s_branch L_role_done{tag}")
        e.label(f"L_role_b{tag}")
        e(f"s_mul_i32 s{T2}, s{sCQ}, 14"); e(f"s_add_u32 s{T2}, s{T2}, s{sQ}"); e(f"s_sub_u32 s{T2}, s{T2}, 18")
        e(f"s_lshr_b32 s{sCG}, s{T2}, 3"); e(f"s_and_b32 s{T2}, s{T2}, 7"); e(f"s_lshl_b32 s{sRB}, s{sRH}, 3"); e(f"s_add_u32 s{sRB}, s{sRB}, s{T2}")
        e.label(f"L_role_done{tag}")
        if o['rot']:
            e(f"s_mul_i32 s{T2}, s{sRH}, 9"); e(f"s_lshl_b32 s{T3}, s{sRH}, 3"); e(f"s_cmp_eq_u32 s{sISA}, 1"); e(f"s_cselect_b32 s{T2}, s{T2}, s{T3}")
            e(f"s_sub_u32 s{sROT}, s{sRB}, s{T2}")
            e(f"s_and_b32 s{T2}, s{sCG}, 1"); e(f"s_mul_i32 s{T2}, s{T2}, 5"); e(f"s_add_u32 s{sROT}, s{sROT}, s{T2}")
            e(f"s_cmp_eq_u32 s{sISA}, 1"); e(f"s_cselect_b32 s{T2}, 0, {o['rotb']}"); e(f"s_add_u32 s{sROT}, s{sROT}, s{T2}")
            e(f"s_cmp_ge_u32 s{sROT}, 10"); e(f"s_cselect_b32 s{T2}, 10, 0"); e(f"s_sub_u32 s{sROT}, s{sROT}, s{T2}")
            e(f"s_cmp_ge_u32 s{sROT}, 10"); e(f"s_cselect_b32 s{T2}, 10, 0"); e(f"s_sub_u32 s{sROT}, s{sROT}, s{T2}")
        else:
            e(f"s_mov_b32 s{sROT}, 0")
        e(f"s_and_b32 s{T0}, s2, 7"); e(f"s_lshr_b32 s{T1}, s2, 3")
        e(f"s_lshl_b32 s{sI3}, s{T0}, 2"); e(f"s_lshr_b32 s{T2}, s{T1}, 3"); e(f"s_add_u32 s{sI3}, s{sI3}, s{T2}")
        e(f"s_and_b32 s{sJ3}, s{T1}, 7")
        e(f"s_and_b32 s{sODD}, s{sCG}, 1")
        e(f"s_mul_i32 s{sT0}, s{sRB}, 114"); e(f"s_sub_u32 s{sT0}, s{sT0}, 14")
        e(f"s_cmp_eq_u32 s{sISA}, 1")
        csel(e, sPITCH, 3840, 3456)
        e(f"s_lshl_b32 s{T2}, s{sRB}, 3"); e(f"s_add_u32 s{T2}, s{T2}, s{sCG}")
        e(f"s_mul_i32 s{T3}, s{sRB}, 7"); e(f"s_add_u32 s{T3}, s{T3}, s{sCG}"); e(f"s_add_u32 s{T3}, s{T3}, 144")
        e(f"s_cmp_eq_u32 s{sISA}, 1")
        e(f"s_cselect_b32 s{sFLAG}, s{T2}, s{T3}")
        e("s_waitcnt lgkmcnt(0)")
        if o['ts'] or o['span']:
            e("v_mov_b32 v0, 0"); e(f"v_writelane_b32 v0, s{sTS}, 8")
        stamp(0)
        srd(e, X, 8, 2048*1280)
        e(f"s_cmp_eq_u32 s{sISA}, 1")
        e(f"s_cselect_b32 s{W}, s10, s16"); e(f"s_cselect_b32 s{T0}, s11, s17")
        csel(e, W+2, 640*3840, 640*3456)
        e(f"s_and_b32 s{W+1}, s{T0}, 0xffff"); e(f"s_mov_b32 s{W+3}, 0x20000")
        srd(e, WS, 30, WS_SIZE)
        srd(e, DBG, 28, 256)


    A3, AB, WB3 = 8, 88, 136
    PW = 6
    def p3_params():
        la, ld = e.newlabel('p3o'), e.newlabel('p3d')
        e(f"s_cmp_lt_u32 s{sWAVE}, 2"); e(f"s_cbranch_scc1 {la}")
        e(f"s_add_u32 s{T0}, s{sWAVE}, 2"); e(f"s_sub_u32 s{T1}, s{sWAVE}, 4"); e(f"s_cmp_ge_u32 s{sWAVE}, 4"); e(f"s_cselect_b32 s{T0}, s{T1}, s{T0}")
        e(f"s_mul_i32 s{T2}, s{T0}, 9")
        e(f"s_mul_i32 s{sACT}, s{sI3}, 54"); e(f"s_add_u32 s{sACT}, s{sACT}, s{T2}"); e(f"s_lshl_b32 s{sACT}, s{sACT}, 12")
        if HP_OFF: e(f"s_add_u32 s{sACT}, s{sACT}, {HP_OFF}")
        e(f"s_add_u32 s{T3}, s{T2}, 20"); e(f"s_mov_b32 s{sN3}, 9"); e(f"s_mov_b32 s{T6}, {BIG}")
        e(f"s_branch {ld}")
        e.label(la)
        e(f"s_mul_i32 s{T3}, s{sWAVE}, 10")
        e(f"s_mul_i32 s{sACT}, s{sI3}, 20"); e(f"s_add_u32 s{sACT}, s{sACT}, s{T3}"); e(f"s_lshl_b32 s{sACT}, s{sACT}, 12"); e(f"s_add_u32 s{sACT}, s{sACT}, {OP_OFF}")
        e(f"s_mov_b32 s{sN3}, 10"); e(f"s_mov_b32 s{T6}, 0")
        e.label(ld)
        e(f"s_mul_i32 s{sWP}, s{sJ3}, 74"); e(f"s_add_u32 s{sWP}, s{sWP}, s{T3}"); e(f"s_mul_i32 s{sWP}, s{sWP}, 5120"); e(f"s_add_u32 s{sWP}, s{sWP}, {WP_OFF}")
        if o['irot']:
            e(f"s_and_b32 s{sIDX}, s{sI3}, 3"); e(f"s_lshl_b32 s{sIDX}, s{sIDX}, 1"); e(f"s_add_u32 s{sIDX}, s{sIDX}, s{sJ3}")
        else:
            e(f"s_mov_b32 s{sIDX}, s{sJ3}")
        e(f"s_sub_u32 s{T4}, s{sIDX}, s{sN3}"); e(f"s_cmp_ge_u32 s{sIDX}, s{sN3}"); e(f"s_cselect_b32 s{sIDX}, s{T4}, s{sIDX}")
        e("v_lshrrev_b32 v6, 1, v1"); e(f"v_add_u32 v6, s{T3}, v6"); e("v_mul_u32_u24 v6, 10, v6")
        e(f"s_mul_i32 s{T4}, s{sJ3}, 5"); e(f"s_lshr_b32 s{T4}, s{T4}, 2"); e("v_and_b32 v7, 1, v1"); e("v_add_u32 v6, v6, v7"); e(f"v_add_u32 v6, s{T4}, v6")
        NB, NA = o['nb'], o['na']
        assert (NB, NA) == (3, 4)
        e("v_mul_u32_u24 v7, 21846, v6"); e("v_lshrrev_b32 v7, 16, v7")
        e(f"v_cmp_gt_u32 vcc, {112*NB}, v6"); e(f"v_subrev_u32 v6, {112*NB}, v6"); e("v_lshrrev_b32 v6, 2, v6"); e("v_add_u32 v6, 112, v6")
        e("v_cndmask_b32 v6, v6, v7, vcc"); e("v_lshlrev_b32 v6, 6, v6")
        e(f"s_lshl_b32 s{T4}, s{sN3}, 1"); e(f"v_cmp_gt_u32 vcc, s{T4}, v1"); e(f"v_mov_b32 v7, {BIG}"); e("s_nop 0"); e("v_cndmask_b32 v232, v7, v6, vcc")
    def wp_poll_issue(dst):
        e(f"s_mov_b32 s{T0}, {FL2_OFF}"); e(f"buffer_load_dword v{dst}, v232, s[{WS}:{WS+3}], s{T0} offen sc1")
    def wp_poll_check(dst):
        lo, lk = e.newlabel('wpl'), e.newlabel('wpk')
        e(f"s_mov_b32 s{T1}, 0x40000"); e(f"s_lshl_b32 s{T2}, s{sN3}, 1")
        e.label(lo)
        e(f"v_cmp_gt_u32 s[{sEX}:{sEX+1}], s{T2}, v1"); e(f"v_cmp_ne_u32 vcc, 1, v{dst}"); e(f"s_and_b64 vcc, vcc, s[{sEX}:{sEX+1}]")
        e(f"s_cbranch_vccz {lk}")
        wp_poll_issue(dst); e("s_waitcnt vmcnt(0)")
        e(f"s_sub_u32 s{T1}, s{T1}, 1"); e(f"s_cmp_lg_u32 s{T1}, 0"); e(f"s_cbranch_scc1 {lo}")
        e.label(lk)
    def w_load(t, vm_=None):
        b = WB3 + 20 * (t % PW); vo = 5 if t == 9 else 4
        e(f"s_add_u32 s{sIW}, s{sIDX}, {t}"); e(f"s_sub_u32 s{sSO}, s{sIW}, s{sN3}"); e(f"s_cmp_ge_u32 s{sIW}, s{sN3}"); e(f"s_cselect_b32 s{sIW}, s{sSO}, s{sIW}")
        e(f"s_mul_i32 s{sSO}, s{sIW}, 5120"); e(f"s_add_u32 s{sSO}, s{sSO}, s{sWP}"); e(f"s_add_u32 s{sSO4}, s{sSO}, 4096")
        for q in range(5):
            if q < 4: e(f"buffer_load_dwordx4 v[{b+4*q}:{b+4*q+3}], v{vo}, s[{WS}:{WS+3}], s{sSO} offen offset:{q*1024} sc1")
            else: e(f"buffer_load_dwordx4 v[{b+4*q}:{b+4*q+3}], v{vo}, s[{WS}:{WS+3}], s{sSO4} offen sc1")
            if vm_: vm_.issue(f'w{t}')
    def w_pref(t0, t1):
        e("v_lshlrev_b32 v4, 4, v1")
        for t in range(t0, t1): w_load(t)

    def flag_addr(dst):
        lo_, ld_ = e.newlabel('fo'), e.newlabel('fd')
        e(f"s_cmp_lt_u32 s{sWAVE}, 2"); e(f"s_cbranch_scc1 {lo_}")
        e(f"s_add_u32 s{T0}, s{sWAVE}, 2"); e(f"s_sub_u32 s{T1}, s{sWAVE}, 4"); e(f"s_cmp_ge_u32 s{sWAVE}, 4"); e(f"s_cselect_b32 s{T0}, s{T1}, s{T0}")
        e(f"s_mul_i32 s{T2}, s{T0}, 9")
        e(f"s_lshr_b32 s{T4}, s{sI3}, 1"); e(f"s_mul_i32 s{T4}, s{T4}, 7"); e(f"s_add_u32 s{T4}, s{T4}, 144")
        e(f"s_lshr_b32 s{T5}, s{T2}, 3"); e(f"s_add_u32 s{T5}, s{T5}, s{T4}")
        e(f"s_add_u32 s{T2}, s{T2}, 8"); e(f"s_lshr_b32 s{T2}, s{T2}, 3"); e(f"s_add_u32 s{T2}, s{T2}, s{T4}")
        e(f"v_mov_b32 v{dst}, s{T5}"); e(f"v_mov_b32 v7, s{T2}"); e("v_cmp_gt_u32 vcc, 4, v1"); e("s_nop 1"); e(f"v_cndmask_b32 v{dst}, v7, v{dst}, vcc")
        e(f"s_branch {ld_}")
        e.label(lo_)
        e(f"s_lshl_b32 s{T4}, s{sI3}, 6"); e(f"s_mul_i32 s{T5}, s{T4}, 575"); e(f"s_lshr_b32 s{T5}, s{T5}, 16")
        e(f"s_add_u32 s{T4}, s{T4}, 63"); e(f"s_mul_i32 s{T4}, s{T4}, 575"); e(f"s_lshr_b32 s{T4}, s{T4}, 16")
        e(f"s_lshl_b32 s{T5}, s{T5}, 3"); e(f"s_lshl_b32 s{T4}, s{T4}, 3"); e(f"s_lshl_b32 s{T1}, s{sWAVE}, 2")
        e(f"s_add_u32 s{T5}, s{T5}, s{T1}"); e(f"s_add_u32 s{T4}, s{T4}, s{T1}")
        e(f"v_mov_b32 v{dst}, s{T5}"); e(f"v_mov_b32 v7, s{T4}"); e("v_cmp_gt_u32 vcc, 4, v1"); e("s_nop 1"); e(f"v_cndmask_b32 v{dst}, v7, v{dst}, vcc")
        e("v_and_b32 v7, 3, v1"); e(f"v_add_u32 v{dst}, v{dst}, v7")
        e.label(ld_)
        e(f"v_lshlrev_b32 v{dst}, 6, v{dst}"); e(f"v_mov_b32 v7, {BIG}"); e("v_cmp_gt_u32 vcc, 8, v1"); e("s_nop 1"); e(f"v_cndmask_b32 v{dst}, v7, v{dst}, vcc")

    vKA, vVA, vOW, vOS = 240, 241, 242, 243
    sOS = 71
    def attn_addr():
        e(f"s_and_b32 s{T0}, s{sWAVE}, 3"); e(f"s_lshr_b32 s{T1}, s{sWAVE}, 2")
        e(f"s_mul_i32 s{T2}, s{T1}, {64*PQ}"); e(f"s_mul_i32 s{T3}, s{T0}, 40"); e(f"s_add_u32 s{T2}, s{T2}, s{T3}")
        e(f"s_add_u32 s{T2}, s{T2}, {QB - 8*PQ}")
        e(f"v_mul_u32_u24 v{vKA}, {PQ}, v1"); e(f"v_add_u32 v{vKA}, s{T2}, v{vKA}")
        e("v_and_b32 v60, 48, v1"); e("v_and_b32 v61, 3, v1"); e("v_lshl_add_u32 v60, v61, 2, v60")
        e("v_bfe_u32 v61, v1, 2, 2"); e("v_add_u32 v60, v60, v61")
        e(f"v_mul_u32_u24 v{vVA}, {PQ}, v60"); e(f"v_add_u32 v{vVA}, s{T2}, v{vVA}")
        e(f"s_mul_i32 s{T2}, s{T1}, {64*PO}"); e(f"s_add_u32 s{T2}, s{T2}, s{T3}"); e(f"s_add_u32 s{T2}, s{T2}, {OB}")
        e(f"v_mul_u32_u24 v{vOW}, {PO}, v1"); e(f"v_add_u32 v{vOW}, s{T2}, v{vOW}")
        for r in range(3):
            e(f"s_add_u32 s{T0}, s{sWAVE}, {8*r}"); e(f"s_lshr_b32 s{T1}, s{T0}, 1"); e(f"s_and_b32 s{T0}, s{T0}, 1")
            e(f"s_lshl_b32 s{T2}, s{T0}, 6")
            e(f"v_add_u32 v60, s{T2}, v1")
            e("v_add_u32 v61, 14, v60")
            e("v_and_b32 v62, 1, v61"); e("v_lshrrev_b32 v63, 1, v61"); e("v_lshl_add_u32 v62, v62, 6, v63")
            e("v_min_u32 v62, 127, v62")
            e(f"v_mul_u32_u24 v62, {PO}, v62"); e(f"s_lshl_b32 s{T3}, s{T1}, 4"); e(f"s_add_u32 s{T3}, s{T3}, {OB}")
            e(f"v_add_u32 v{vOS+2*r}, s{T3}, v62")
            e(f"s_add_u32 s{T3}, s{sT0}, 14"); e(f"v_add_u32 v63, s{T3}, v60")
            e(f"s_mul_i32 s{T4}, s{sCG}, 10"); e(f"s_add_u32 s{T4}, s{T4}, s{T1}")
            e(f"s_lshr_b32 s{T5}, s{T4}, 2"); e(f"s_and_b32 s{T4}, s{T4}, 3")
            e(f"s_lshl_b32 s{T5}, s{T5}, 12"); e(f"s_lshl_b32 s{T4}, s{T4}, 8"); e(f"s_add_u32 s{T5}, s{T5}, s{T4}"); e(f"s_add_u32 s{sOS+r}, s{T5}, {OP_OFF}")
            e("v_lshrrev_b32 v64, 6, v63"); e(f"v_mul_u32_u24 v64, {20*4096}, v64")
            e("v_bfe_u32 v65, v63, 4, 2"); e("v_lshl_add_u32 v64, v65, 10, v64")
            e("v_and_b32 v65, 15, v63"); e("v_lshl_add_u32 v64, v65, 4, v64")
            e(f"v_cmp_gt_u32 vcc, 114, v60"); e(f"s_mov_b64 s[{sEX}:{sEX+1}], vcc"); e(f"v_cmp_gt_u32 vcc, 2048, v63"); e(f"s_and_b64 vcc, vcc, s[{sEX}:{sEX+1}]")
            e(f"v_mov_b32 v65, {BIG}"); e("s_nop 1"); e(f"v_cndmask_b32 v{vOS+2*r+1}, v65, v64, vcc")
        if o['early45']: flag_addr(249)

    prologue('c')
    vX, vE, vO, vX1 = 2, 3, 4, 5
    ACC = 8
    XB = [136, 152]; WB = [168, 200]
    e(f"s_lshr_b32 s{sMH}, s{sWAVE}, 1"); e(f"s_and_b32 s{sNH}, s{sWAVE}, 1")
    e(f"s_cmp_eq_u32 s2, 0"); e("s_cbranch_scc0 L_noclear")
    e(f"s_cmp_eq_u32 s{sWAVE}, 0"); e("s_cbranch_scc0 L_noclear")
    e("v_lshlrev_b32 v8, 6, v1"); e("v_mov_b32 v9, 0")
    for k in range(8):
        e(f"s_mov_b32 s{T0}, {FL_OFF + k*4096}")
        e(f"buffer_store_dword v9, v8, s[{WS}:{WS+3}], s{T0} offen sc1")
    e("s_waitcnt vmcnt(0)")
    e("v_mov_b32 v9, 1"); e("v_mov_b32 v8, 0")
    e(f"s_mov_b64 s[{sEX}:{sEX+1}], exec"); e("s_mov_b64 exec, 1")
    e(f"buffer_store_dword v9, v8, s[{DBG}:{DBG+3}], 0 offen sc1")
    e(f"s_mov_b64 exec, s[{sEX}:{sEX+1}]")
    e.label("L_noclear")
    e(f"s_mov_b32 s{M1}, s18"); e(f"s_and_b32 s{M1+1}, s19, 0xffff")
    e(f"s_cmp_eq_u32 s{sISA}, 1"); e(f"s_cselect_b32 s{M1+2}, 0, 3456"); e(f"s_mov_b32 s{M1+3}, 0x20000")
    e("v_lshrrev_b32 v7, 4, v1")
    e("v_lshlrev_b32 v232, 3, v7")
    e(f"s_lshl_b32 s{T0}, s{sCG}, 9"); e(f"s_lshl_b32 s{T1}, s{sNH}, 8"); e(f"s_add_u32 s{T0}, s{T0}, s{T1}")
    e(f"v_add_u32 v232, s{T0}, v232")
    for nt in range(8):
        e(f"buffer_load_dwordx2 v[{XB[0]+2*nt}:{XB[0]+2*nt+1}], v232, s[{M1}:{M1+3}], 0 offen offset:{nt*32}")
    if o['bari']: e("s_barrier")
    e("v_and_b32 v233, 15, v1")
    e("v_bfe_u32 v234, v233, 1, 3")
    e("v_xor_b32 v234, v7, v234")
    e("v_lshlrev_b32 v234, 4, v234")
    e(f"v_lshl_add_u32 v{vX}, v233, 7, v234")
    e(f"s_lshl_b32 s{T0}, s{sMH}, 13")
    e(f"v_add_u32 v{vX}, s{T0}, v{vX}")
    e(f"v_xor_b32 v{vX1}, 64, v{vX}")
    e("v_lshrrev_b32 v233, 2, v1"); e("v_and_b32 v233, 3, v233")
    e("v_lshl_add_u32 v233, v7, 3, v233")
    e("v_and_b32 v234, 3, v1"); e("v_lshlrev_b32 v234, 3, v234")
    e("v_lshl_add_u32 v235, v233, 6, v234")
    e(f"s_lshl_b32 s{T0}, s{sNH}, 13"); e(f"s_add_u32 s{T0}, s{T0}, {WBASE}")
    e(f"v_add_u32 v235, s{T0}, v235")
    e("v_and_b32 v236, 1, v7"); e("v_lshlrev_b32 v236, 5, v236")
    e(f"v_add_u32 v{vE}, v235, v236")
    e("v_xor_b32 v236, 32, v236")
    e(f"v_add_u32 v{vO}, v235, v236")
    p3_params()
    attn_addr()
    e("v_and_b32 v233, 15, v1"); e("v_lshrrev_b32 v7, 4, v1")
    e(f"s_lshl_b32 s{T0}, s{sMH}, 6")
    e(f"v_add_u32 v233, s{T0}, v233")
    e(f"v_mul_u32_u24 v234, {PQ}, v233")
    e("v_lshl_add_u32 v234, v7, 3, v234")
    e(f"v_add_u32 v234, {QB}, v234")
    e(f"s_lshl_b32 s{T0}, s{sODD}, 5"); e(f"v_add_u32 v235, s{T0}, v234")
    e(f"s_lshl_b32 s{T0}, s{sODD}, 7"); e(f"v_subrev_u32 v236, s{T0}, v234")
    e("s_waitcnt vmcnt(0)")
    for nt in range(8):
        a = ACC + nt * 16
        s0 = XB[0] + 2 * nt
        e(f"v_lshlrev_b32 v{a}, 16, v{s0}"); e(f"v_and_b32 v{a+1}, 0xffff0000, v{s0}")
        e(f"v_lshlrev_b32 v{a+2}, 16, v{s0+1}"); e(f"v_and_b32 v{a+3}, 0xffff0000, v{s0+1}")
        for mt in range(1, 4):
            for r in range(4): e(f"v_mov_b32 v{a+4*mt+r}, v{a+r}")
    def reads(st):
        buf = st & 1
        L = []
        for mt in range(4): L.append(f"ds_read_b128 v[{XB[buf]+4*mt}:{XB[buf]+4*mt+3}], v{vX if buf == 0 else vX1} offset:{((st >> 1) & 1) * XU + mt*2048}")
        for nt in range(8):
            for h in range(2):
                d = WB[buf] + 4 * nt + 2 * h
                L.append(f"ds_read_b64_tr_b16 v[{d}:{d+1}], v{vE if nt % 2 == 0 else vO} offset:{(st & 3) * 16384 + (nt>>1)*2048 + h*256}")
        return L
    if o['touch']: e("s_barrier")
    e("s_barrier")
    stamp(1)
    for r in reads(0): e(r)
    e("s_waitcnt lgkmcnt(0)")
    e("s_barrier")
    e(f"s_mov_b32 s{sIT}, 4")
    if o['prio']: e("s_setprio 1")
    def step(q, rd, ctl, bar):
        half = q & 1
        fill = []
        if q == 3 and rd: fill += [f"v_xor_b32 v{vX}, 0x8000, v{vX}", f"v_xor_b32 v{vX1}, 0x8000, v{vX1}"]
        if rd: fill += reads(q + 1)
        for m in range(32):
            nt, mt = m // 4, m % 4
            a = ACC + (nt * 4 + mt) * 4
            e(f"v_mfma_f32_16x16x32_bf16 v[{a}:{a+3}], v[{WB[half]+4*nt}:{WB[half]+4*nt+3}], v[{XB[half]+4*mt}:{XB[half]+4*mt+3}], v[{a}:{a+3}]")
            if fill: e(fill.pop(0))
            if ctl and m == 28: e(f"s_sub_u32 s{sIT}, s{sIT}, 1")
            if ctl and m == 29: e(f"s_cmp_lg_u32 s{sIT}, 0")
        assert not fill
        if rd: e("s_waitcnt lgkmcnt(0)")
        if bar: e("s_barrier")
    e(".p2align 3")
    e.label("L_main")
    for q in range(4): step(q, True, q == 3, True)
    e("s_cbranch_scc1 L_main")
    step(0, True, False, True)
    step(1, True, False, True)
    step(2, True, False, False)
    step(3, False, False, False)
    if o['prio']: e("s_setprio 0")
    stamp(2)
    e("v_lshlrev_b32 v4, 4, v1")
    wp_poll_issue(255)
    e(f"s_cmp_eq_u32 s{sISA}, 1"); e("s_cbranch_scc1 L_epiA")

    e(f"s_lshl_b32 s{T0}, s{sRB}, 1"); e(f"s_add_u32 s{T0}, s{T0}, s{sMH}"); e(f"s_mul_i32 s{T0}, s{T0}, 54")
    e(f"s_lshl_b32 s{T1}, s{sCG}, 3"); e(f"s_lshl_b32 s{T2}, s{sNH}, 2"); e(f"s_add_u32 s{T1}, s{T1}, s{T2}")
    e(f"s_add_u32 s{T0}, s{T0}, s{T1}"); e(f"s_lshl_b32 s{T0}, s{T0}, 12")
    if HP_OFF: e(f"s_add_u32 s{T0}, s{T0}, {HP_OFF}")
    e(f"s_mov_b32 s{T7}, s{T1}")
    for up in range(4):
        if up == 2:
            e(f"s_cmp_ge_u32 s{T7}, 52"); e("s_cbranch_scc1 L_epiB_short")
        for mt in range(4):
            d = 236 + 4 * ((up * 4 + mt) % 4)
            for tt in range(2):
                a = ACC + ((2 * up + tt) * 4 + mt) * 4
                for r in range(4): e(f"v_max_f32 v{a+r}, 0, v{a+r}")
                e(f"v_pk_mul_f32 v[{a}:{a+1}], v[{a}:{a+1}], v[{a}:{a+1}]")
                e(f"v_pk_mul_f32 v[{a+2}:{a+3}], v[{a+2}:{a+3}], v[{a+2}:{a+3}]")
                e(f"v_cvt_pk_bf16_f32 v{d+2*tt}, v{a}, v{a+1}")
                e(f"v_cvt_pk_bf16_f32 v{d+2*tt+1}, v{a+2}, v{a+3}")
            e(f"buffer_store_dwordx4 v[{d}:{d+3}], v4, s[{WS}:{WS+3}], s{T0} offen offset:{mt*1024} sc1")
        e(f"s_add_u32 s{T0}, s{T0}, 4096")
    e.label("L_epiB_short")
    e.label("L_epiB_done")
    stamp(9)
    e("s_branch L_cw_pref")

    e.label("L_epiA")
    colE = [0, 32, 64, 96, 160, 192, 224, 256, 320, 352, 384, 416, 128, 288, 448]
    e(f"s_cmp_eq_u32 s{sNH}, 1"); e("s_cbranch_scc1 L_epiA_n1")
    def qkv_write(nh):
        for nt in range(8):
            tile = 8 * nh + nt
            if tile == 15: continue
            for mt in range(4):
                a = ACC + (nt * 4 + mt) * 4
                d = 250 + 2 * ((nt * 4 + mt) % 2)
                e(f"v_cvt_pk_bf16_f32 v{d}, v{a}, v{a+1}"); e(f"v_cvt_pk_bf16_f32 v{d+1}, v{a+2}, v{a+3}")
                e(f"ds_write_b64 v{235 if tile < 12 else 236}, v[{d}:{d+1}] offset:{colE[tile] + mt*16*PQ}")
    qkv_write(0)
    e("s_branch L_epiA_w")
    e.label("L_epiA_n1")
    qkv_write(1)
    e(f"s_cmp_eq_u32 s{sCG}, 0"); e("s_cbranch_scc0 L_epiA_w")
    for mt in range(4):
        a = ACC + (7 * 4 + mt) * 4
        e(f"v_cvt_pk_bf16_f32 v12, v{a}, v{a}"); e("v_lshlrev_b32 v12, 16, v12")
        e("v_mul_f32 v12, 0xbfb8aa3b, v12")
        e("v_exp_f32 v12, v12"); e("v_add_f32 v12, 1.0, v12"); e("v_rcp_f32 v12, v12")
        e("v_cvt_pk_bf16_f32 v12, v12, v12"); e(f"v_lshlrev_b32 v{8+mt}, 16, v12")
    e("v_and_b32 v233, 15, v1")
    for mt in range(4):
        e(f"v_add_u32 v12, {16*mt}, v233")
        e("v_lshlrev_b32 v13, 1, v12"); e(f"s_add_u32 s{T0}, s{sT0}, s{sMH}"); e(f"v_add_u32 v13, s{T0}, v13")
        e("v_lshlrev_b32 v14, 2, v13")
        e(f"v_cmp_le_u32 s[{sM}:{sM+1}], 7, v12"); e(f"v_cmp_gt_u32 s[{sM+2}:{sM+3}], 16, v1"); e(f"v_cmp_gt_u32 vcc, 2048, v13")
        e(f"s_and_b64 s[{sM}:{sM+1}], s[{sM}:{sM+1}], s[{sM+2}:{sM+3}]"); e(f"s_and_b64 vcc, vcc, s[{sM}:{sM+1}]")
        e(f"v_mov_b32 v15, {BIG}"); e("s_nop 1"); e("v_cndmask_b32 v14, v15, v14, vcc")
        e(f"s_mov_b32 s{T1}, {G_OFF}")
        e(f"buffer_store_dword v{8+mt}, v14, s[{WS}:{WS+3}], s{T1} offen sc1")
    e.label("L_epiA_w")
    e("s_waitcnt lgkmcnt(0)")
    e.label("L_attn")
    e("s_barrier")
    stamp(3)
    Q = 16; K = 28; V = 60; S = 92; O = 104
    for s_ in range(5): e(f"ds_read_b64 v[{Q+2*s_}:{Q+2*s_+1}], v{vKA} offset:{8*PQ + 8*s_}")
    for kb in range(3):
        for s_ in range(5): e(f"ds_read_b64 v[{K+10*kb+2*s_}:{K+10*kb+2*s_+1}], v{vKA} offset:{4*kb*PQ + 160 + 8*s_}")
    for kb in range(3):
        for dg in range(5): e(f"ds_read_b64_tr_b16 v[{V+10*kb+2*dg}:{V+10*kb+2*dg+1}], v{vVA} offset:{4*kb*PQ + 320 + 8*dg}")
    def sprinkle(t):
        if not o['spr']: return
        lab = e.newlabel('sp')
        e(f"s_cmp_lt_u32 s{sWAVE}, 4"); e(f"s_cbranch_scc0 {lab}")
        if t == 0:
            e("s_waitcnt vmcnt(0)")
            wp_poll_check(255)
        w_load(t)
        e.label(lab)
    e("v_lshlrev_b32 v4, 4, v1")
    sprinkle(0)
    for r in range(12): e(f"v_mov_b32 v{S+r}, 0")
    for r in range(20): e(f"v_mov_b32 v{O+r}, 0")
    e("v_and_b32 v9, 3, v1")
    e(f"v_cmp_eq_u32 s[{sM}:{sM+1}], 0, v9"); e(f"v_cmp_ge_u32 s[{sM+2}:{sM+3}], 1, v9"); e(f"v_cmp_ge_u32 s[{sM+4}:{sM+5}], 2, v9")
    e("s_waitcnt lgkmcnt(15)")
    stamp(9)
    for s_ in range(5):
        for kb in range(3):
            e(f"v_mfma_f32_4x4x4_16b_bf16 v[{S+4*kb}:{S+4*kb+3}], v[{K+10*kb+2*s_}:{K+10*kb+2*s_+1}], v[{Q+2*s_}:{Q+2*s_+1}], v[{S+4*kb}:{S+4*kb+3}]")
    sprinkle(1)
    Y = 124
    e(f"v_cndmask_b32 v{Y}, v{S+9}, v{S+1}, s[{sM}:{sM+1}]")
    e(f"v_cndmask_b32 v{Y+1}, v{S+10}, v{S+2}, s[{sM+2}:{sM+3}]")
    e(f"v_cndmask_b32 v{Y+2}, v{S+11}, v{S+3}, s[{sM+4}:{sM+5}]")
    ys = [Y, Y+1, Y+2, S+4, S+5, S+6, S+7, S+8]
    e(f"s_cmp_eq_u32 s{sRB}, 0"); e("s_cbranch_scc0 L_nomask")
    e("v_and_b32 v9, 60, v1"); e("v_sub_u32 v9, 15, v9")
    e(f"v_mov_b32 v10, 0xf149f2ca")
    for n, reg in ((4, S+4), (5, S+5), (6, S+6), (7, S+7), (8, S+8)):
        e(f"v_cmp_lt_i32 vcc, {n}, v9"); e(f"v_cndmask_b32 v{reg}, v{reg}, v10, vcc")
    for n, reg, m in ((1, Y, sM), (2, Y+1, sM+2), (3, Y+2, sM+4)):
        e(f"v_mov_b32 v11, {n+8}"); e(f"v_cndmask_b32 v11, v11, {n}, s[{m}:{m+1}]")
        e(f"v_cmp_lt_i32 vcc, v11, v9"); e(f"v_cndmask_b32 v{reg}, v{reg}, v10, vcc")
    e.label("L_nomask")
    e(f"v_max3_f32 v9, v{ys[0]}, v{ys[1]}, v{ys[2]}"); e(f"v_max3_f32 v10, v{ys[3]}, v{ys[4]}, v{ys[5]}")
    e(f"v_max3_f32 v9, v9, v{ys[6]}, v{ys[7]}"); e("v_max_f32 v9, v9, v10")
    CS = 0.22360679774997896 * 1.4426950408889634
    import struct
    csb = struct.unpack('<I', struct.pack('<f', CS))[0]
    e(f"s_mov_b32 s{T4}, {csb}")
    e(f"v_mul_f32 v9, s{T4}, v9")
    for y in ys: e(f"v_fma_f32 v{y}, v{y}, s{T4}, -v9")
    for y in ys: e(f"v_exp_f32 v{y}, v{y}")
    e(f"v_add_f32 v9, v{ys[0]}, v{ys[1]}"); e(f"v_add_f32 v10, v{ys[2]}, v{ys[3]}")
    e(f"v_add_f32 v11, v{ys[4]}, v{ys[5]}"); e(f"v_add_f32 v12, v{ys[6]}, v{ys[7]}")
    e("v_add_f32 v9, v9, v10"); e("v_add_f32 v11, v11, v12"); e("v_add_f32 v9, v9, v11")
    e("v_rcp_f32 v9, v9")
    for y in ys: e(f"v_mul_f32 v{y}, v{y}, v9")
    P = 128
    e(f"v_cndmask_b32 v{S+1}, 0, v{Y}, s[{sM}:{sM+1}]"); e(f"v_cndmask_b32 v{S+9}, v{Y}, 0, s[{sM}:{sM+1}]")
    e(f"v_cndmask_b32 v{S+2}, 0, v{Y+1}, s[{sM+2}:{sM+3}]"); e(f"v_cndmask_b32 v{S+10}, v{Y+1}, 0, s[{sM+2}:{sM+3}]")
    e(f"v_cndmask_b32 v{S+3}, 0, v{Y+2}, s[{sM+4}:{sM+5}]"); e(f"v_cndmask_b32 v{S+11}, v{Y+2}, 0, s[{sM+4}:{sM+5}]")
    e(f"v_mov_b32 v{S}, 0")
    for kb in range(3):
        e(f"v_cvt_pk_bf16_f32 v{P+2*kb}, v{S+4*kb}, v{S+4*kb+1}"); e(f"v_cvt_pk_bf16_f32 v{P+2*kb+1}, v{S+4*kb+2}, v{S+4*kb+3}")
    sprinkle(2)
    e("s_waitcnt lgkmcnt(0)")
    stamp(10)
    for kb in range(3):
        for dg in range(5):
            e(f"v_mfma_f32_4x4x4_16b_bf16 v[{O+4*dg}:{O+4*dg+3}], v[{V+10*kb+2*dg}:{V+10*kb+2*dg+1}], v[{P+2*kb}:{P+2*kb+1}], v[{O+4*dg}:{O+4*dg+3}]")
    for dg in range(5):
        e(f"v_cvt_pk_bf16_f32 v{Q+2*dg}, v{O+4*dg}, v{O+4*dg+1}"); e(f"v_cvt_pk_bf16_f32 v{Q+2*dg+1}, v{O+4*dg+2}, v{O+4*dg+3}")
        e(f"ds_write_b64 v{vOW}, v[{Q+2*dg}:{Q+2*dg+1}] offset:{8*dg}")
    sprinkle(3)
    e("s_waitcnt lgkmcnt(0)")
    e("s_barrier")
    stamp(14)
    e(f"ds_read_b128 v[8:11], v{vOS}"); e(f"ds_read_b128 v[12:15], v{vOS+2}"); e(f"ds_read_b128 v[16:19], v{vOS+4}")
    e("s_waitcnt lgkmcnt(2)"); e(f"buffer_store_dwordx4 v[8:11], v{vOS+1}, s[{WS}:{WS+3}], s{sOS} offen sc1")
    e("s_waitcnt lgkmcnt(1)"); e(f"buffer_store_dwordx4 v[12:15], v{vOS+3}, s[{WS}:{WS+3}], s{sOS+1} offen sc1")
    e(f"s_cmp_ge_u32 s{sWAVE}, 4"); e("s_cbranch_scc1 L_ostore_done")
    e("s_waitcnt lgkmcnt(0)"); e(f"buffer_store_dwordx4 v[16:19], v{vOS+5}, s[{WS}:{WS+3}], s{sOS+2} offen sc1")
    e.label("L_ostore_done")
    stamp(12)
    if o['early45']:
        e(f"s_mov_b32 s{T1}, {FL_OFF}"); e(f"buffer_load_dword v6, v249, s[{WS}:{WS+3}], s{T1} offen sc1")
        w_pref(4, 6)
        e("s_waitcnt vmcnt(10)")
        e("s_branch L_bar3")
    e(f"s_cmp_ge_u32 s{sWAVE}, 4"); e("s_cbranch_scc0 L_cw_pref")
    e("s_waitcnt vmcnt(0)")
    e("s_branch L_bar3")
    e.label("L_cw_pref")
    e(f"s_waitcnt vmcnt(0)")
    stamp(13)
    e.label("L_bar3")
    e("s_barrier")
    stamp(4)
    e(f"s_cmp_eq_u32 s{sWAVE}, 0"); e("s_cbranch_scc0 L_flag_done")
    e(f"s_lshl_b32 s{T0}, s{sFLAG}, 6"); e(f"s_add_u32 s{T0}, s{T0}, {FL_OFF}")
    e("v_mov_b32 v2, 0"); e("v_mov_b32 v3, 1")
    e(f"s_mov_b64 s[{sEX}:{sEX+1}], exec"); e("s_mov_b64 exec, 1")
    e(f"buffer_store_dword v3, v2, s[{WS}:{WS+3}], s{T0} offen sc1")
    e(f"s_mov_b64 exec, s[{sEX}:{sEX+1}]")
    e.label("L_flag_done")
    lwc = e.newlabel('nowp'); e(f"s_cmp_lt_u32 s{sWAVE}, 4"); e(f"s_cbranch_scc0 {lwc}")
    if o['early45']: e(f"s_cmp_eq_u32 s{sISA}, 1"); e(f"s_cbranch_scc1 {lwc}")
    wp_poll_check(255)
    e.label(lwc)
    if o['stop'] == 'p1':
        e("s_branch L_fin")
    else:
        e("s_branch L_phase3")

    def loader_tail():
        stamp(2)
        e("s_waitcnt vmcnt(0)")
        wp_poll_check(2)
        EA, EB = o['ea'], o['eb']
        lb_ = e.newlabel('eb')
        w_pref(0, min(EA, EB))
        if EA != EB:
            e(f"s_cmp_eq_u32 s{sISA}, {1 if EA > EB else 0}"); e(f"s_cbranch_scc0 {lb_}")
            w_pref(min(EA, EB), max(EA, EB))
            e.label(lb_)
        if o['steps']:
            e(f"s_lshl_b32 s{T0}, s2, 3"); e(f"s_add_u32 s{T0}, s{T0}, s{sWAVE}"); e(f"s_lshl_b32 s{T0}, s{T0}, 8"); e(f"s_add_u32 s{T0}, s{T0}, {TS_OFF + 0x40000}")
            e("v_lshlrev_b32 v249, 2, v1"); e("s_mov_b64 exec, 0xffffffff")
            e(f"buffer_store_dword v250, v249, s[{WS}:{WS+3}], s{T0} offen")
            e(f"buffer_store_dword v251, v249, s[{WS}:{WS+3}], s{T0} offen offset:128")
            e("s_mov_b64 exec, -1")
        e(f"s_cmp_eq_u32 s{sISA}, 1"); e("s_cbranch_scc1 L_attn")
        e("s_branch L_bar3")
    def loader_early(j, vm):
        if j == 16:
            wp_poll_issue(2); vm.issue('wpp')
    def loader_setup3():
        p3_params()
        lab = e.newlabel('aa')
        e(f"s_cmp_eq_u32 s{sISA}, 1"); e(f"s_cbranch_scc0 {lab}")
        attn_addr()
        e.label(lab)

    e.label("L_ldx")
    prologue('x')
    vm = VM(e)
    VX = 8
    e("v_lshrrev_b32 v2, 3, v1")
    e("v_and_b32 v3, 7, v1"); e("v_lshrrev_b32 v4, 1, v2"); e("v_xor_b32 v3, v3, v4"); e("v_lshlrev_b32 v3, 4, v3")
    e("v_xor_b32 v4, 64, v3")
    e(f"v_lshlrev_b32 v2, s{sISA}, v2")
    e(f"s_lshl_b32 s{T0}, s{sRB}, 7"); e(f"s_cmp_eq_u32 s{sISA}, 1"); e(f"s_cselect_b32 s{T0}, s{sT0}, s{T0}")
    e(f"s_lshl_b32 s{T1}, 8, s{sISA}")
    e(f"s_movk_i32 s{T3}, 2047"); e(f"s_movk_i32 s{T4}, 1280"); e(f"s_lshl_b32 s{sKX}, s{sROT}, 7")
    def xadv():
        e(f"s_add_u32 s{sKX}, s{sKX}, 128"); e(f"s_cmp_eq_u32 s{sKX}, s{T4}"); e(f"s_cselect_b32 s{sKX}, 0, s{sKX}")
    def xissue(u, n):
        e(f"s_mov_b32 m0, {(u % NX) * XU + n * 1024}")
        e(f"buffer_load_dwordx4 v{VX+n}, s[{X}:{X+3}], s{sKX} offen lds"); vm.issue(f'x{u}')
    for n in range(16):
        if n == 8:
            e(f"s_add_u32 s{T2}, s{sT0}, 1"); e(f"s_cmp_eq_u32 s{sISA}, 1"); e(f"s_cselect_b32 s{T0}, s{T2}, s{T0}")
        e(f"v_add_u32 v5, s{T0}, v2"); e(f"s_add_u32 s{T0}, s{T0}, s{T1}")
        e(f"v_med3_i32 v5, v5, 0, s{T3}")
        e(f"v_mad_u32_u24 v{VX+n}, v5, s{T4}, v{3 + (n & 1)}")
        if not o['touch']: xissue(0, n)
    if o['touch']:
        e("s_barrier")
        for n in range(16): xissue(0, n)
    stamp(11)
    if o['bari']: e("s_barrier")
    xadv()
    for n in range(16): xissue(1, n)
    stamp(1)
    loader_setup3()
    e(f"s_movk_i32 s{T4}, 1280")
    vm.wait('x0')
    e("s_barrier")
    xadv()
    for n in range(16): xissue(2, n)
    e("s_barrier")
    for j in range(18):
        u = (j + 6) // 2; hf = (j + 6) % 2
        if u < 10:
            if hf == 0: xadv()
            for n in range(8 * hf, 8 * hf + 8): xissue(u, n)
        if (j + 2) % 2 == 0 and (j + 2) // 2 < 10: vm.wait(f'x{(j+2)//2}')
        loader_early(j, vm)
        stepbar(j)
    loader_tail()

    for a_ in range(2):
        e.label(f"L_ldw{a_}")
        prologue(f'w{a_}')
        vm = VM(e)
        VW = 8
        e("v_lshrrev_b32 v2, 2, v1"); e(f"v_mul_lo_u32 v2, v2, s{sPITCH}")
        e("v_and_b32 v3, 1, v1"); e("v_lshl_add_u32 v2, v3, 4, v2")
        e("v_lshrrev_b32 v3, 1, v1"); e("v_lshrrev_b32 v4, 5, v1"); e("v_xor_b32 v3, v3, v4"); e("v_and_b32 v3, 1, v3")
        e("v_cmp_eq_u32 vcc, 1, v3")
        e(f"s_mul_i32 s{T4}, s{sCG}, 160"); e(f"s_lshl_b32 s{T5}, s{sODD}, 5"); e(f"s_add_u32 s{T5}, s{T5}, s{T4}")
        e(f"s_lshl_b32 s{T6}, s{sCG}, 9")
        e(f"s_lshl_b32 s{T7}, s{sPITCH}, 5"); e(f"s_mul_i32 s{sKW0}, s{T7}, s{sROT}"); e(f"s_lshl_b32 s{sKW0}, s{sKW0}, 1")
        e(f"s_lshl_b32 s{sKWH}, s{sPITCH}, 4"); e(f"s_add_u32 s{sKW1}, s{sKW0}, s{sKWH}"); e(f"s_mul_i32 s{sKWE}, s{T7}, 20")
        for pp in range(4):
            P = 4 * a_ + pp
            e(f"s_add_u32 s{T0}, s{T6}, {64*P}"); e(f"s_add_u32 s{T1}, s{T0}, 32")
            if P >= 6:
                e(f"s_cmp_ge_u32 s{T0}, 3456"); e(f"s_cselect_b32 s{T0}, {BIG}, s{T0}"); e(f"s_cselect_b32 s{T1}, {BIG}, s{T1}")
            if P < 6:
                e(f"s_add_u32 s{T2}, s{T5}, {1280*(P>>1) + 64*(P&1)}"); e(f"s_add_u32 s{T3}, s{T2}, 32")
            else:
                e(f"s_cmp_eq_u32 s{sODD}, 1"); e(f"s_cselect_b32 s{T2}, 0, 128") if False else None
                e(f"s_lshl_b32 s{T2}, s{sODD}, 7"); e(f"s_sub_u32 s{T2}, s{T4}, s{T2}"); e(f"s_add_u32 s{T2}, s{T2}, {128 + (2560 if P == 7 else 0)}")
                if P == 6: e(f"s_add_u32 s{T3}, s{T2}, 1280")
                else: e(f"s_mov_b32 s{T3}, {BIG}")
            e(f"s_cmp_eq_u32 s{sISA}, 1"); e(f"s_cselect_b32 s{T0}, s{T2}, s{T0}"); e(f"s_cselect_b32 s{T1}, s{T3}, s{T1}")
            e(f"v_mov_b32 v4, s{T0}"); e(f"v_mov_b32 v5, s{T1}")
            e(f"v_cndmask_b32 v4, v4, v5, vcc"); e(f"v_add_u32 v{VW+pp}, v4, v2")
        def wstage(j):
            for hf in range(2):
                for pp in range(4):
                    gatehalf = (a_ == 1 and pp == 3)
                    if gatehalf: e(f"s_mov_b64 exec, s[{sM}:{sM+1}]")
                    e(f"s_mov_b32 m0, {WBASE + (j % NW) * 16384 + (4*a_ + pp) * 2048 + hf * 1024}")
                    e(f"buffer_load_dwordx4 v{VW+pp}, s[{W}:{W+3}], s{sKW1 if hf else sKW0} offen lds"); vm.issue(f'st{j}')
                    if gatehalf: e("s_mov_b64 exec, -1")
            e(f"s_add_u32 s{sKW0}, s{sKW0}, s{T7}"); e(f"s_cmp_eq_u32 s{sKW0}, s{sKWE}"); e(f"s_cselect_b32 s{sKW0}, 0, s{sKW0}")
            e(f"s_add_u32 s{sKW1}, s{sKW0}, s{sKWH}")
        if a_ == 1:
            e(f"s_mov_b64 s[{sM}:{sM+1}], -1")
            e(f"s_cmp_eq_u32 s{sISA}, 1"); lab = e.newlabel('ng'); e(f"s_cbranch_scc0 {lab}")
            e(f"s_not_b64 s[{sM}:{sM+1}], vcc")
            e.label(lab)
        if o['touch']: e("s_barrier")
        wstage(0)
        if a_ == 0: stamp(11)
        if o['bari']: e("s_barrier")
        wstage(1)
        if a_ == 0: stamp(1)
        loader_setup3()
        vm.wait('st0')
        e("s_barrier")
        wstage(2); wstage(3)
        vm.wait('st1')
        e("s_barrier")
        for j in range(18):
            if j + 4 < 20: wstage(j + 4)
            if j + 2 < 20: vm.wait(f'st{j+2}')
            loader_early(j, vm)
            stepbar(j)
        loader_tail()

    e.label("L_helper")
    if o['ctouch']:
        e(f"s_getpc_b64 s[{T0}:{T0+1}]")
        e.label("L_pc")
        e(f"s_sub_u32 s{T0}, s{T0}, L_pc-{KNAME}"); e(f"s_subb_u32 s{T0+1}, s{T0+1}, 0")
        e(f"s_lshr_b32 s{T2}, s2, 3"); e(f"s_mul_i32 s{T2}, s{T2}, {o['nl']}")
        e(f"v_add_u32 v4, s{T2}, v1"); e("v_lshlrev_b32 v2, 7, v4")
        e(f"v_mov_b32 v3, s{T0+1}"); e(f"v_add_co_u32 v2, vcc, s{T0}, v2"); e("v_addc_co_u32 v3, vcc, 0, v3, vcc")
        e(f"v_cmp_gt_u32 vcc, (L_end-{KNAME})/128, v4")
        e(f"s_mov_b64 exec, {(1 << o['nl']) - 1}"); e("s_and_b64 exec, exec, vcc")
        lct = e.newlabel('ct'); e(f"s_cbranch_execz {lct}")
        e("global_load_dword v8, v[2:3], off")
        e.label(lct)
        e("s_mov_b64 exec, -1")
    prologue('h')
    vm = VM(e)
    srd(e, M1, 24, 1280)
    e("v_lshlrev_b32 v2, 4, v1")
    for m in range(2):
        e(f"s_mov_b32 m0, {GTAB + 1024*m}"); e(f"s_movk_i32 s{T0}, {1024*m}")
        e(f"buffer_load_dwordx4 v2, s[{M1}:{M1+3}], s{T0} offen lds"); vm.issue('gate')
    if o['bari']: e("s_barrier")
    loader_setup3()
    TA, TB = 88, 92
    srd(e, TA, 10, 640*3840); srd(e, TB, 16, 640*3456)
    e(f"s_mul_i32 s{T0}, s{sRH}, 1012"); e(f"s_mul_i32 s{T1}, s{sQ}, 33"); e(f"s_add_u32 s{T0}, s{T0}, s{T1}")
    e(f"v_add_u32 v3, s{T0}, v1"); e("v_mul_u32_u24 v4, 1280, v3"); e(f"v_mov_b32 v5, {BIG}")
    e("v_cmp_gt_u32 vcc, 2048, v3"); e("s_nop 1"); e("v_cndmask_b32 v4, v5, v4, vcc")
    e("v_cmp_gt_u32 vcc, 33, v1"); e("s_nop 1"); e("v_cndmask_b32 v4, v5, v4, vcc")
    sTX, sTA, sTB = 65, 66, 67
    e(f"s_mov_b32 s{sTX}, 0"); e(f"s_mov_b32 s{sTA}, 0"); e(f"s_mov_b32 s{sTB}, 0")
    def touch_x(tag='tx'):
        e(f"buffer_load_dword v8, v4, s[{X}:{X+3}], s{sTX} offen"); vm.issue(tag)
        e(f"s_add_u32 s{sTX}, s{sTX}, 128")
    if o['touch']: touch_x('t0')
    e("v_mul_u32_u24 v6, 43, v1"); e("v_lshrrev_b32 v6, 7, v6"); e("v_mul_u32_u24 v7, 3, v6"); e("v_sub_u32 v7, v1, v7")
    e("v_mul_u32_u24 v6, 1280, v6"); e("v_lshl_add_u32 v6, v7, 7, v6")
    e(f"s_mul_i32 s{T0}, s{sCQ}, 320"); e(f"s_and_b32 s{T0}, s{T0}, 0xffffff80"); e(f"s_mul_i32 s{T1}, s{sQ}, 3840"); e(f"s_add_u32 s{T0}, s{T0}, s{T1}")
    e(f"v_add_u32 v6, s{T0}, v6"); e("v_cmp_gt_u32 vcc, 9, v1"); e("s_nop 1"); e("v_cndmask_b32 v6, v5, v6, vcc")
    e(f"s_mul_i32 s{T0}, s{sCQ}, 14"); e(f"s_add_u32 s{T1}, s{T0}, 13"); e(f"s_lshr_b32 s{T0}, s{T0}, 3"); e(f"s_lshr_b32 s{T1}, s{T1}, 3")
    e(f"s_add_u32 s{T1}, s{T1}, 1"); e(f"s_lshl_b32 s{T0}, s{T0}, 9"); e(f"s_lshl_b32 s{T1}, s{T1}, 9"); e(f"s_min_u32 s{T1}, s{T1}, 3456")
    e("v_lshlrev_b32 v7, 7, v1"); e(f"v_add_u32 v7, s{T0}, v7"); e(f"v_cmp_gt_u32 vcc, s{T1}, v7")
    e(f"s_mul_i32 s{T2}, s{sQ}, 3456"); e(f"v_add_u32 v7, s{T2}, v7"); e("v_cndmask_b32 v7, v5, v7, vcc")
    def touch_w(tag='tw'):
        e(f"buffer_load_dword v8, v6, s[{TA}:{TA+3}], s{sTA} offen"); vm.issue(tag)
        e(f"buffer_load_dword v8, v7, s[{TB}:{TB+3}], s{sTB} offen"); vm.issue(tag)
        e(f"s_add_u32 s{sTA}, s{sTA}, {32*3840}"); e(f"s_add_u32 s{sTB}, s{sTB}, {32*3456}")
    if o['touch']:
        touch_w('t0'); touch_w('t0'); touch_x('t0'); touch_w('t0')
        for j in range(3, DW):
            if j % 2 == 0: touch_x()
            touch_w()
    stamp(11)
    e("v_lshrrev_b32 v12, 5, v1"); e("v_lshlrev_b32 v12, 4, v12")
    e("v_bfe_u32 v13, v1, 3, 2"); e("v_lshl_add_u32 v12, v13, 1, v12")
    e("v_bfe_u32 v13, v1, 1, 1"); e("v_add_u32 v12, v12, v13")
    e("v_bfe_u32 v13, v1, 2, 1"); e("v_lshl_add_u32 v12, v13, 3, v12")
    e(f"v_lshlrev_b32 v13, 1, v12"); e(f"v_add_u32 v13, {GTAB}, v13")
    e(f"v_add_u32 v9, 1280, v13"); e(f"s_lshl_b32 s{T0}, s{sROT}, 7"); e(f"v_add_u32 v13, s{T0}, v13")
    e("v_lshrrev_b32 v14, 3, v12"); e("v_and_b32 v14, 1, v14"); e("v_xor_b32 v14, 1, v14"); e("v_lshlrev_b32 v14, 5, v14")
    e("v_lshl_add_u32 v14, v12, 6, v14"); e("v_and_b32 v15, 1, v1"); e("v_lshl_add_u32 v14, v15, 4, v14")
    for sl in range(4): e(f"v_add_u32 v{24+sl}, {WBASE + 7*2048 + sl*16384}, v14")
    e(f"s_cmp_eq_u32 s{sCG}, 0"); e(f"s_cselect_b32 s{sGATE}, 1, 2"); e(f"s_cmp_eq_u32 s{sISA}, 1"); e(f"s_cselect_b32 s{sGATE}, s{sGATE}, 0")
    NBu, NAu = o['nb'], o['na']
    NU = max(NBu, NAu)
    RV = 44
    TRA = 140
    sSRC = 8; sRPN, sRPB, sRPS = 77, 14, 75
    e(f"s_sub_u32 s{sRPS}, s{sFLAG}, 144"); e(f"s_mul_i32 s{sRPB}, s{sRPS}, {NBu}"); e(f"s_mov_b32 s{sRPN}, {NBu}")
    e(f"s_mul_i32 s{T0}, s{sRB}, 7"); e(f"s_add_u32 s{T0}, s{T0}, s{sCG}"); e(f"s_sub_u32 s{T0}, s{T0}, 1")
    e(f"s_mul_i32 s{T1}, s{T0}, {NAu}"); e(f"s_add_u32 s{T1}, s{T1}, {112*NBu}"); e(f"s_add_u32 s{T0}, s{T0}, 112")
    e(f"s_cmp_eq_u32 s{sISA}, 1"); e(f"s_cselect_b32 s{sRPS}, s{T0}, s{sRPS}"); e(f"s_cselect_b32 s{sRPB}, s{T1}, s{sRPB}"); e(f"s_cselect_b32 s{sRPN}, {NAu}, s{sRPN}")
    e(f"s_cmp_eq_u32 s{sGATE}, 1"); e(f"s_cselect_b32 s{sRPN}, 0, s{sRPN}")
    labr = e.newlabel('rpsetup')
    e(f"s_cmp_eq_u32 s{sRPN}, 0"); e(f"s_cbranch_scc1 {labr}")
    e("v_lshrrev_b32 v10, 3, v1"); e("v_mul_u32_u24 v10, 1280, v10"); e("v_and_b32 v11, 7, v1"); e("v_lshl_add_u32 v10, v11, 4, v10")
    e("v_lshrrev_b32 v16, 4, v1"); e("v_bfe_u32 v17, v1, 2, 2"); e("v_and_b32 v18, 3, v1"); e("v_lshlrev_b32 v21, 4, v1")
    UO, U2 = 88, 92
    srd(e, UO, 12, 640*1280); srd(e, U2, 20, 1728*1280)
    for m in range(NU):
        sU, sC, sIV = T0, T1, T2
        e(f"s_add_u32 s{T3}, s{sRPB}, {m}")
        e(f"s_mul_i32 s{sU}, s{T3}, 205"); e(f"s_lshr_b32 s{sU}, s{sU}, 11")
        e(f"s_mul_i32 s{T4}, s{sU}, 10"); e(f"s_sub_u32 s{sC}, s{T3}, s{T4}")
        e(f"s_cmp_lt_u32 s{T3}, 740"); e(f"s_cselect_b32 s{sIV}, 0, {BIG}")
        e(f"s_cmp_gt_u32 s{sRPN}, {m}"); e(f"s_cselect_b32 s{sIV}, s{sIV}, {BIG}")
        e(f"s_cmp_lt_u32 s{sU}, 20")
        e(f"s_cselect_b32 s{T4}, 0, 20"); e(f"s_cselect_b32 s{T5}, 3, 2"); csel(e, T6, 512, 2048)
        e(f"s_cselect_b32 s{70}, 1, 0")
        e(f"s_sub_u32 s{T4}, s{sU}, s{T4}"); e(f"s_mul_i32 s{T4}, s{T4}, {32*1280}")
        e(f"s_lshl_b32 s70, s70, 31"); e(f"s_or_b32 s{sSRC+m}, s{T4}, s70")
        e(f"s_lshl_b32 s{T4}, s{sC}, 7"); e(f"s_or_b32 s{T4}, s{T4}, s{sIV}"); e(f"v_add_u32 v{RV+m}, s{T4}, v10")
        e(f"v_lshlrev_b32 v19, s{T5}, v16"); e("v_add_u32 v19, v19, v17")
        e("v_lshlrev_b32 v19, 7, v19"); e("v_lshl_add_u32 v19, v18, 3, v19"); e(f"v_add_u32 v{TRA+3*m}, {RSCR + m*4096}, v19")
        e(f"v_add_u32 v{TRA+3*m+1}, s{T6}, v{TRA+3*m}"); e(f"v_or_b32 v{TRA+3*m+2}, s{sIV}, v21")
        e(f"s_lshl_b32 s{T3}, s{sC}, 2")
        for tt in range(4):
            e(f"s_mul_i32 s{T4}, s{T3}, 52"); e(f"s_lshr_b32 s{T4}, s{T4}, 8"); e(f"s_mul_i32 s{T4}, s{T4}, 365")
            e(f"s_add_u32 s{T4}, s{T4}, s{T3}"); e(f"s_mul_i32 s{T5}, s{sU}, 5"); e(f"s_add_u32 s{T4}, s{T4}, s{T5}")
            e(f"s_lshl_b32 s{T4}, s{T4}, 10"); e(f"s_add_u32 s{T4}, s{T4}, {WP_OFF}"); e(f"s_and_b32 s{T4}, s{T4}, 0x00ffffff")
            e(f"v_writelane_b32 v170, s{T4}, {4*m+tt}")
            e(f"s_add_u32 s{T3}, s{T3}, 1")
    e.label(labr)
    if o['touch']: vm.wait('t0')
    else: vm.wait('gate')
    if o['touch']: e("s_barrier")
    GV = 100
    labg, labz = e.newlabel('gv'), e.newlabel('gz')
    e(f"s_cmp_eq_u32 s{sGATE}, 1"); e(f"s_cbranch_scc0 {labz}")
    for st in range(20):
        e(f"ds_read_u16 v{GV+st}, v13"); e("v_add_u32 v13, 64, v13"); e("v_subrev_u32 v23, 1280, v13")
        e("v_cmp_le_u32 vcc, v9, v13"); e("s_nop 1"); e("v_cndmask_b32 v13, v13, v23, vcc")
    e("s_waitcnt lgkmcnt(0)")
    for st in range(20): e(f"v_lshl_or_b32 v{GV+st}, v{GV+st}, 16, v{GV+st}")
    e(f"s_branch {labg}")
    e.label(labz)
    e(f"s_cmp_eq_u32 s{sGATE}, 2"); e(f"s_cbranch_scc0 {labg}")
    for q_ in range(4): e(f"v_mov_b32 v{32+q_}, 0")
    for sl in range(4): e(f"ds_write_b128 v{24+sl}, v[32:35]")
    e("s_waitcnt lgkmcnt(0)")
    e.label(labg)
    def gated(sts):
        lab = e.newlabel('gw')
        e(f"s_cmp_eq_u32 s{sGATE}, 1"); e(f"s_cbranch_scc0 {lab}")
        for st in sts:
            for q_ in range(4): e(f"v_mov_b32 v{32+q_}, v{GV+st}")
            e(f"ds_write_b128 v{24 + st % NW}, v[32:35]")
        e("s_waitcnt lgkmcnt(0)")
        e.label(lab)
    gated([0, 1, 2])
    e("s_barrier")
    e("s_barrier")
    e("s_setprio 2")
    def rp_issue(m):
        lw, ld = e.newlabel('rpw'), e.newlabel('rpd')
        e(f"s_and_b32 s{T4}, s{sSRC+m}, 0x7fffffff"); e(f"s_bitcmp1_b32 s{sSRC+m}, 31"); e(f"s_cbranch_scc1 {lw}")
        for srd_, lab in ((92, None), (88, lw)):
            if lab: e(f"s_branch {ld}"); e.label(lab)
            for d in range(4):
                e(f"s_mov_b32 m0, {RSCR + m*4096 + d*1024}")
                e(f"buffer_load_dwordx4 v{RV+m}, s[{srd_}:{srd_+3}], s{T4} offen lds")
                if d < 3: e(f"s_add_u32 s{T4}, s{T4}, {8*1280}")
        e.label(ld)
        for d in range(4): vm.issue(f'rp{m}')
    def rp_finish(m):
        vm.wait(f'rp{m}')
        D = 176 + 16 * (m % 2)
        for tt in range(4):
            e(f"ds_read_b64_tr_b16 v[{D+4*tt}:{D+4*tt+1}], v{TRA+3*m} offset:{32*tt}")
            e(f"ds_read_b64_tr_b16 v[{D+4*tt+2}:{D+4*tt+3}], v{TRA+3*m+1} offset:{32*tt}")
        for tt in range(4): e(f"v_readlane_b32 s{16+tt}, v170, {4*m+tt}")
        e("s_waitcnt lgkmcnt(0)")
        for tt in range(4):
            e(f"buffer_store_dwordx4 v[{D+4*tt}:{D+4*tt+3}], v{TRA+3*m+2}, s[{WS}:{WS+3}], s{16+tt} offen sc1"); vm.issue('rps')
    R = o['rpj']
    def b_only(fn):
        lab = e.newlabel('bo')
        e(f"s_cmp_eq_u32 s{sRPN}, 0"); e(f"s_cbranch_scc1 {lab}"); fn(); e.label(lab)
    for j in range(18):
        if o['touch'] and j + DW < 20: touch_w()
        if o['touch'] and j % 2 == 0 and (j // 2 + 5) < 10: touch_x()
        if j + 3 < 20: gated([j + 3])
        if j == R:
            b_only(lambda: [rp_issue(m) for m in range(NU)])
            e("v_mov_b32 v28, 0"); e(f"buffer_load_dword v29, v28, s[{DBG}:{DBG+3}], 0 offen sc1"); vm.issue('chk')
        if R + 3 <= j < R + 5:
            ms = [m for m in (2 * (j - R - 3), 2 * (j - R - 3) + 1) if m < NU]
            b_only(lambda: [rp_finish(m) for m in ms])
        if j == R + 8:
            lo, lk = e.newlabel('rcl'), e.newlabel('rck')
            e("s_waitcnt vmcnt(0)")
            e(f"s_mov_b32 s{T0}, 0x40000")
            e.label(lo)
            e("v_cmp_eq_u32 vcc, 1, v29"); e(f"s_cbranch_vccnz {lk}")
            e(f"buffer_load_dword v29, v28, s[{DBG}:{DBG+3}], 0 offen sc1"); e("s_waitcnt vmcnt(0)")
            e(f"s_sub_u32 s{T0}, s{T0}, 1"); e(f"s_cmp_lg_u32 s{T0}, 0"); e(f"s_cbranch_scc1 {lo}")
            e.label(lk)
            vm.q = []
            def f():
                e(f"s_lshl_b32 s{T0}, s{sRPS}, 6"); e(f"s_add_u32 s{T0}, s{T0}, {FL2_OFF}")
                e("v_mov_b32 v30, 1"); e("s_mov_b64 exec, 1")
                e(f"buffer_store_dword v30, v28, s[{WS}:{WS+3}], s{T0} offen sc1"); vm.issue('flag')
                e("s_mov_b64 exec, -1")
            b_only(f)
        loader_early(j, vm)
        stepbar(j)
    e("s_setprio 0")
    loader_tail()

    e.label("L_phase3")
    if o['p3prio']:
        e(f"s_cmp_ge_u32 s{sWAVE}, 4"); lp_ = e.newlabel('hp'); e(f"s_cbranch_scc0 {lp_}"); e("s_setprio 1"); e.label(lp_)
    e("v_lshlrev_b32 v4, 4, v1")
    e(f"s_cmp_eq_u32 s{sN3}, 9"); e(f"s_cselect_b32 s{T6}, {BIG}, 0"); e(f"v_or_b32 v5, s{T6}, v4")
    flag_addr(2)
    e("v_mov_b32 v7, 0"); e("v_cmp_gt_u32 vcc, 8, v1"); e("s_nop 1"); e("v_cndmask_b32 v7, 0, 1, vcc")
    e(f"s_mov_b32 s{T1}, {FL_OFF}")
    if o['spr']:
        lb4 = e.newlabel('b4')
        e(f"s_cmp_ge_u32 s{sWAVE}, 4"); e(f"s_cbranch_scc1 {lb4}"); e(f"s_cmp_eq_u32 s{sISA}, 1"); e(f"s_cbranch_scc1 {lb4}")
        w_pref(0, 4)
        e.label(lb4)
        if o['early45']:
            lb5 = e.newlabel('b5')
            e(f"s_cmp_eq_u32 s{sISA}, 1"); e(f"s_cbranch_scc1 {lb5}")
            w_pref(4, 6)
            e(f"buffer_load_dword v6, v2, s[{WS}:{WS+3}], s{T1} offen sc1"); e("s_waitcnt vmcnt(0)")
            e.label(lb5)
    else:
        e(f"s_cmp_ge_u32 s{sWAVE}, 4"); e("s_cbranch_scc1 L_p3_L")
    def w_addr(t):
        return [f"s_add_u32 s{sIW}, s{sIDX}, {t}", f"s_sub_u32 s{sSO}, s{sIW}, s{sN3}", f"s_cmp_ge_u32 s{sIW}, s{sN3}", f"s_cselect_b32 s{sIW}, s{sSO}, s{sIW}",
                f"s_mul_i32 s{sSO}, s{sIW}, 5120", f"s_add_u32 s{sSO}, s{sSO}, s{sWP}", f"s_add_u32 s{sSO4}, s{sSO}, 4096"]
    def w_ld(t, q):
        b = WB3 + 20 * (t % PW); vo = 5 if t == 9 else 4
        if q < 4: return f"buffer_load_dwordx4 v[{b+4*q}:{b+4*q+3}], v{vo}, s[{WS}:{WS+3}], s{sSO} offen offset:{q*1024} sc1"
        return f"buffer_load_dwordx4 v[{b+4*q}:{b+4*q+3}], v{vo}, s[{WS}:{WS+3}], s{sSO4} offen sc1"
    sAO = 70
    def a_addr(t):
        return [f"s_add_u32 s{sIA}, s{sIDX}, {t}", f"s_sub_u32 s{sAO}, s{sIA}, s{sN3}", f"s_cmp_ge_u32 s{sIA}, s{sN3}", f"s_cselect_b32 s{sIA}, s{sAO}, s{sIA}",
                f"s_lshl_b32 s{sAO}, s{sIA}, 12", f"s_add_u32 s{sAO}, s{sAO}, s{sACT}"]
    def a_ld(t, mt):
        b = AB + 16 * (t % 3); vo = 5 if t == 9 else 4
        return f"buffer_load_dwordx4 v[{b+4*mt}:{b+4*mt+3}], v{vo}, s[{WS}:{WS+3}], s{sAO} offen offset:{mt*1024} sc1"
    def p3_main(var):
        vm3 = VM(e)
        E = o['ea']; assert o['ea'] == o['eb']
        miss = list(range(E, 6)) if var in ('L', 'U') else list(range(6))
        first, later = miss[:2], miss[2:]
        if var == 'U' and o['early45']: first, later = [], []
        else: e(f"buffer_load_dword v6, v2, s[{WS}:{WS+3}], s{T1} offen sc1"); vm3.issue('poll')
        for t in first:
            for x in w_addr(t): e(x)
            for q in range(5): e(w_ld(t, q)); vm3.issue(f'w{t}')
        for r in range(80): e(f"v_mov_b32 v{A3+r}, 0")
        if 'poll' in vm3.q: vm3.wait('poll')
        lp, lk = e.newlabel('poll'), e.newlabel('pollok')
        e(f"s_mov_b32 s{T0}, 0x40000")
        e.label(lp)
        e("v_cmp_ne_u32 vcc, v6, v7"); e(f"s_cbranch_vccz {lk}")
        e(f"buffer_load_dword v6, v2, s[{WS}:{WS+3}], s{T1} offen sc1"); e("s_waitcnt vmcnt(0)")
        e(f"s_sub_u32 s{T0}, s{T0}, 1"); e(f"s_cmp_lg_u32 s{T0}, 0"); e(f"s_cbranch_scc1 {lp}")
        e.label(lk)
        stamp(5)
        for t in (0, 1):
            for x in a_addr(t): e(x)
            for mt in range(4): e(a_ld(t, mt)); vm3.issue(f'a{t}')
        if var in ('C', 'U'):
            e(f"s_lshl_b32 s{T2}, s{sI3}, 8"); e(f"s_add_u32 s{T2}, s{T2}, {G_OFF}"); e("v_lshlrev_b32 v2, 2, v1")
            e(f"s_cmp_eq_u32 s{sWAVE}, 0"); e(f"s_cselect_b32 s{T3}, 0, {BIG}"); e(f"v_or_b32 v2, s{T3}, v2")
            e(f"buffer_load_dword v3, v2, s[{WS}:{WS+3}], s{T2} offen sc1"); vm3.issue('g')
        for t in later:
            for x in w_addr(t): e(x)
            for q in range(5): e(w_ld(t, q)); vm3.issue(f'w{t}')
        for t in range(10):
            idx = [i for i, tg in enumerate(vm3.q) if tg in (f'a{t}', f'w{t}')]
            if idx: vm3.wait(vm3.q[max(idx)])
            if t == 9:
                e(f"s_cmp_eq_u32 s{sN3}, 9"); e("s_cbranch_scc1 L_p3_main_done")
            bw = WB3 + 20 * (t % PW); ba = AB + 16 * (t % 3)
            doa = t + 2 < 10; dow = t + PW < 10
            pre = (a_addr(t + 2) if doa else []) + (w_addr(t + PW) if dow else [])
            for q in range(5):
                for mt in range(4):
                    a = A3 + (q * 4 + mt) * 4
                    e(f"v_mfma_f32_16x16x32_bf16 v[{a}:{a+3}], v[{bw+4*q}:{bw+4*q+3}], v[{ba+4*mt}:{ba+4*mt+3}], v[{a}:{a+3}]")
                    if q == 0:
                        for x in pre[mt*4:(mt+1)*4]: e(x)
                if doa and q < 4: e(a_ld(t + 2, q)); vm3.issue(f'a{t+2}')
                if dow: e(w_ld(t + PW, q)); vm3.issue(f'w{t+PW}')
        e("s_branch L_p3_main_done") if var == 'C' else None
    if o['spr']:
        assert o['ea'] == 4
        p3_main('U')
    else:
        p3_main('C')
        e.label("L_p3_L")
        p3_main('L')
    e.label("L_p3_main_done")
    stamp(6)
    e("s_setprio 0")
    srd(e, M1, 26, 2048 * 1280)
    srd(e, M2, 22, 1280)
    e("s_waitcnt vmcnt(0)")
    e("v_lshrrev_b32 v6, 4, v1"); e("v_lshlrev_b32 v6, 3, v6"); e(f"s_mul_i32 s{T4}, s{sJ3}, 160"); e(f"v_add_u32 v6, s{T4}, v6")
    for r in range(3):
        e(f"s_add_u32 s{T0}, s{sWAVE}, {8*r}"); e(f"s_lshr_b32 s{T0}, s{T0}, 2"); e(f"s_lshl_b32 s{T0}, s{T0}, 5")
        e(f"v_add_u32 v{96+r}, s{T0}, v6")
        e(f"buffer_load_dwordx2 v[{88+2*r}:{89+2*r}], v{96+r}, s[{M2}:{M2+3}], 0 offen")
    e(f"s_mul_i32 s{T0}, s{sWAVE}, 20480"); e(f"v_add_u32 v2, s{T0}, v4")
    lz = e.newlabel('t0')
    e(f"s_cmp_eq_u32 s{sWAVE}, 0"); e(f"s_cbranch_scc0 {lz}")
    e("v_lshlrev_b32 v7, 2, v1"); e("ds_write_b32 v7, v3")
    e("s_branch L_red_w1")
    e.label(lz)
    e(f"ds_write_b128 v2, v[{A3}:{A3+3}]")
    e.label("L_red_w1")
    for tau in range(1, 20): e(f"ds_write_b128 v2, v[{A3+4*tau}:{A3+4*tau+3}] offset:{tau*1024}")
    e("s_waitcnt lgkmcnt(0)")
    e("s_barrier")
    stamp(15)
    RD = 136
    for r in range(3):
        if r == 2:
            e(f"s_cmp_ge_u32 s{sWAVE}, 4"); e("s_cbranch_scc1 L_red_rd_done")
        e(f"s_add_u32 s{T0}, s{sWAVE}, {8*r}"); e(f"s_and_b32 s{T2}, s{T0}, 3")
        e(f"s_lshl_b32 s{T3}, s{T0}, 10"); e(f"v_add_u32 v2, s{T3}, v4"); e("v_add_u32 v3, 0x14000, v2")
        for w in range(8):
            e(f"ds_read_b128 v[{RD+32*r+4*w}:{RD+32*r+4*w+3}], v{2 if w < 4 else 3} offset:{(w % 4) * 20480}")
        e("v_and_b32 v7, 15, v1"); e(f"s_lshl_b32 s{T5}, s{T2}, 4"); e(f"v_add_u32 v7, s{T5}, v7")
        e(f"v_lshlrev_b32 v{100+r}, 2, v7"); e(f"ds_read_b32 v{104+r}, v{100+r}")
        e(f"s_lshl_b32 s{T4}, s{sI3}, 6"); e(f"v_add_u32 v7, s{T4}, v7"); e(f"v_mul_u32_u24 v7, 1280, v7"); e(f"v_add_u32 v{96+r}, v7, v{96+r}")
    e.label("L_red_rd_done")
    e("s_waitcnt vmcnt(0)")
    for r in range(3):
        if r == 2:
            e(f"s_cmp_ge_u32 s{sWAVE}, 4"); e("s_cbranch_scc1 L_fin")
        P = RD + 32 * r
        e("s_waitcnt lgkmcnt(0)") if r == 0 else None
        if r == 0:
            lo = e.newlabel('own')
            e(f"s_cmp_eq_u32 s{sWAVE}, 0"); e(f"s_cbranch_scc0 {lo}")
            for q in range(4): e(f"v_mov_b32 v{P+q}, v{A3+q}")
            e.label(lo)
        for q in range(4):
            e(f"v_add_f32 v{P+q}, v{P+q}, v{P+4+q}")
            e(f"v_add_f32 v{P+8+q}, v{P+8+q}, v{P+12+q}"); e(f"v_add_f32 v{P+16+q}, v{P+16+q}, v{P+20+q}")
            e(f"v_add_f32 v{P+24+q}, v{P+24+q}, v{P+28+q}")
            e(f"v_add_f32 v{P+8+q}, v{P+8+q}, v{P+16+q}"); e(f"v_add_f32 v{P+8+q}, v{P+8+q}, v{P+24+q}")
        bb = 88 + 2 * r
        e(f"v_lshlrev_b32 v108, 16, v{bb}"); e(f"v_and_b32 v109, 0xffff0000, v{bb}"); e(f"v_lshlrev_b32 v110, 16, v{bb+1}"); e(f"v_and_b32 v111, 0xffff0000, v{bb+1}")
        e(f"v_sub_f32 v112, 1.0, v{104+r}")
        for q in range(4):
            e(f"v_add_f32 v{P+8+q}, v{P+8+q}, v{108+q}"); e(f"v_mul_f32 v{P+8+q}, v{P+8+q}, v112"); e(f"v_fma_f32 v{P+8+q}, v{P+q}, v{104+r}, v{P+8+q}")
        e(f"v_cvt_pk_bf16_f32 v{P}, v{P+8}, v{P+9}"); e(f"v_cvt_pk_bf16_f32 v{P+1}, v{P+10}, v{P+11}")
        e(f"buffer_store_dwordx2 v[{P}:{P+1}], v{96+r}, s[{M1}:{M1+3}], 0 offen")
    e.label("L_fin")
    if o['ts']:
        stamp(7)
        e(f"s_lshl_b32 s{T0}, s2, 3"); e(f"s_add_u32 s{T0}, s{T0}, s{sWAVE}"); e(f"s_lshl_b32 s{T0}, s{T0}, 6"); e(f"s_add_u32 s{T0}, s{T0}, {TS_OFF}")
        e("v_lshlrev_b32 v2, 2, v1"); e("s_mov_b64 exec, 0xffff")
        e(f"buffer_store_dword v0, v2, s[{WS}:{WS+3}], s{T0} offen")
    if o['span']:
        stamp(7)
        e("v_readlane_b32 s56, v0, 8"); e("s_nop 3"); e("v_subrev_u32 v0, s56, v0")
        e(f"s_lshl_b32 s57, s2, 3"); e(f"s_add_u32 s57, s57, s{sWAVE}")
        e(f"s_cmp_eq_u32 s57, {o['span_a']}"); e("s_cselect_b32 s58, 4, -1")
        e(f"s_cmp_eq_u32 s57, {o['span_b']}"); e("s_cselect_b32 s58, 32, s58")
        e("s_cmp_eq_u32 s58, -1"); e("s_cbranch_scc1 L_end")
        e("v_lshlrev_b32 v2, 2, v1"); e("v_add_u32 v2, s58, v2"); e("s_mov_b64 exec, 0xfe")
        e(f"buffer_store_dword v0, v2, s[{DBG}:{DBG+3}], 0 offen")
    e.label("L_end")
    body, nh = e.text()
    hdr = open('gated_mix__sliding_local_dilated__dense_activation_squared_relu__prompt.s.ref').read().split('\n')
    comments = [l for l in hdr if l.startswith(';') and '@launch' not in l and 'Override launch' not in l and 'grid=ceil' not in l]
    return "\n".join(comments) + f"""
; @launch grid=(256,1,1) block=(512,1,1) lds={LDS_BYTES}
.amdgcn_target "amdgcn-amd-amdhsa--gfx950"
.text
.globl {KNAME}
.p2align 8
.type {KNAME},@function
{KNAME}:
{body}
    s_endpgm
.section .rodata,"a"
.p2align 6
.amdhsa_kernel {KNAME}
  .amdhsa_next_free_vgpr 256
  .amdhsa_next_free_sgpr 102
  .amdhsa_accum_offset 256
  .amdhsa_group_segment_fixed_size 0
  .amdhsa_kernarg_size 96
  .amdhsa_user_sgpr_count 2
  .amdhsa_user_sgpr_kernarg_segment_ptr 1
  .amdhsa_system_sgpr_workgroup_id_x 1
.end_amdhsa_kernel
"""

if __name__ == "__main__":
    import argparse
    ap = argparse.ArgumentParser()
    ap.add_argument('-o', default='k.s'); ap.add_argument('--stop', default=None); ap.add_argument('--ts', action='store_true'); ap.add_argument('--span', action='store_true'); ap.add_argument('--touch', action='store_true'); ap.add_argument('--norot', action='store_true'); ap.add_argument('--steps', action='store_true'); ap.add_argument('--noprio', action='store_true'); ap.add_argument('--rpj', type=int, default=2); ap.add_argument('--ea', type=int, default=4); ap.add_argument('--eb', type=int, default=4); ap.add_argument('--irot', action='store_true'); ap.add_argument('--noct', action='store_true'); ap.add_argument('--nospr', action='store_true'); ap.add_argument('--nop3prio', action='store_true'); ap.add_argument('--bari', action='store_true'); ap.add_argument('--e45', action='store_true')
    a = ap.parse_args()
    open(a.o, 'w').write(gen(dict(stop=a.stop, ts=a.ts, span=a.span, touch=a.touch, rot=not a.norot, steps=a.steps, prio=not a.noprio, rpj=a.rpj, ea=a.ea, eb=a.eb, irot=a.irot, ctouch=not a.noct, spr=not a.nospr, p3prio=not a.nop3prio, bari=a.bari, early45=a.e45)))
```
